```python
import torch

def _softmax(x, axis=-1):
    return torch.softmax(x, dim=axis)
def _gelu(x):
    return torch.nn.functional.gelu(x, approximate="tanh")
def _silu(x):
    return torch.nn.functional.silu(x)
def _sigmoid(x):
    return torch.sigmoid(x)
def _layernorm(x, axis=-1, eps=1e-5):
    m = x.mean(dim=axis, keepdim=True)
    v = x.var(dim=axis, keepdim=True, unbiased=False)
    return (x - m) / torch.sqrt(v + eps)
def _scatter_add(tgt, idx, src, axis=0):
    return tgt.clone().index_add_(axis, idx, src)
def _segment_sum(src, seg, n):
    out = torch.zeros((n,) + src.shape[1:], dtype=src.dtype)
    return out.index_add_(0, seg, src)
def _pad(x, pw):
    flat = tuple(v for pair in reversed(pw) for v in pair)
    return torch.nn.functional.pad(x, flat)

kernel_name = 'recurrent_scan__spectral_gfnet__glu_gated_glu__prompt'

def setup_inputs():

    _w = (lambda a: (lambda t: t.to(torch.bfloat16) if t.is_floating_point() else t)(torch.as_tensor(a)))
    def _A_setup():
        B, S, D = 1, 2048, 448
        Df = D // 2 + 1
        return {
            "x": _w((lambda *s: torch.randn(*s, dtype=torch.bfloat16) * 0.05)(B, S, D)),
            "w_r": _w((lambda *s: torch.randn(*s, dtype=torch.bfloat16) * 0.2)(S, Df) * 0.02),
            "w_i": _w((lambda *s: torch.randn(*s, dtype=torch.bfloat16) * 0.2)(S, Df) * 0.02),
        }
    _A_in = _A_setup()

    def _B_setup():
        B, S, D, F = 1, 2048, 448, 1792
        return {
            "x": _w((lambda *s: torch.randn(*s, dtype=torch.bfloat16) * 0.05)(B, S, D)),
            "w_gate": _w((lambda *s: torch.randn(*s, dtype=torch.bfloat16) * 0.2)(D, F)),
            "w_up": _w((lambda *s: torch.randn(*s, dtype=torch.bfloat16) * 0.1)(D, F)),
            "w_down": _w((lambda *s: torch.randn(*s, dtype=torch.bfloat16) * 0.1)(F, D)),
        }
    _B_in = _B_setup()

    return {
        "A_x": _A_in["x"],
        "A_w_r": _A_in["w_r"],
        "A_w_i": _A_in["w_i"],
        "B_x": _B_in["x"],
        "B_w_gate": _B_in["w_gate"],
        "B_w_up": _B_in["w_up"],
        "B_w_down": _B_in["w_down"],
    }

def reference(A_x, A_w_r, A_w_i, B_x, B_w_gate, B_w_up, B_w_down):
    def _A_ref(x, w_r, w_i):
        B, S, D = x.shape
        X = (lambda x, axes=(-2,-1): torch.fft.rfft2(x.float(), dim=axes))(x, axes=(-2, -1))
        W = w_r + 1j * w_i
        X = X * W
        y = (lambda x, s, axes=(-2,-1): torch.fft.irfft2(x, s=s, dim=axes).to(torch.bfloat16))(X, (S, D), axes=(-2, -1))
        return y

    def _B_ref(x, w_gate, w_up, w_down):
        g = torch.einsum("bsd,df->bsf", x, w_gate)
        u = torch.einsum("bsd,df->bsf", x, w_up)
        h = _sigmoid(g) * u
        return torch.einsum("bsf,fd->bsd", h, w_down)

    x = A_x
    xn = _layernorm(x, axis=-1)
    s = _A_ref(xn, A_w_r, A_w_i)
    g = _silu(_B_ref(xn, B_w_gate, B_w_up, B_w_down))
    return x + s * g
```

```python
import re, subprocess

REG_RE = re.compile(r'(?<![\w.])([vas])(?:\[(\d+):(\d+)\]|(\d+))(?![\w])')
TRANS = ("v_exp_f32", "v_log_f32", "v_rcp_f32", "v_rsq_f32", "v_sqrt_f32", "v_sin_f32", "v_cos_f32", "v_rcp_iflag_f32")

def regs_of(op):
    out = []
    for m in REG_RE.finditer(op):
        k = m.group(1)
        if m.group(2) is not None:
            out += [(k, i) for i in range(int(m.group(2)), int(m.group(3)) + 1)]
        else:
            out.append((k, int(m.group(4))))
    for name in ("vcc", "exec", "m0"):
        if re.search(r'(?<![\w])' + name + r'(_lo|_hi)?(?![\w])', op):
            out.append((name, 0))
    return out

def split_ops(s):
    ops, depth, cur = [], 0, ""
    for ch in s:
        if ch in "[(": depth += 1
        if ch in "])": depth -= 1
        if ch == "," and depth == 0:
            ops.append(cur.strip()); cur = ""
        else:
            cur += ch
    if cur.strip(): ops.append(cur.strip())
    return ops

class I:
    __slots__ = ("text", "op", "kind", "rd", "wr", "tok", "c_rd", "ab_rd", "size", "note", "dpp", "data_rd", "wide")
    def __init__(self, text, tok=None):
        self.text = text; self.tok = tok; self.note = None
        self.c_rd = []; self.ab_rd = []; self.data_rd = []; self.wide = False
        t = text.split(";")[0].strip()
        if t.endswith(":") or t.startswith(".") or t.startswith("@") or not t:
            self.op = t; self.kind = "meta"; self.rd = []; self.wr = []; self.dpp = False
            return
        sp = t.split(None, 1)
        op = sp[0]; rest = sp[1] if len(sp) > 1 else ""
        self.op = op = re.sub(r'_(e32|e64|dpp|sdwa)$', '', op)
        self.dpp = ("_dpp" in sp[0]) or ("quad_perm" in rest) or ("row_" in rest)
        ops = split_ops(rest)
        R = [regs_of(o.split(" offen")[0].split(" offset")[0].split(" op_sel")[0].split(" quad_perm")[0].split(" row_")[0].split(" neg_")[0]) for o in ops]
        flat = lambda l: [r for x in l for r in x]
        rd, wr = [], []
        if op.startswith("v_mfma"):
            self.kind = "mfma"; wr = R[0]; self.ab_rd = R[1] + R[2]; self.c_rd = R[3]; rd = self.ab_rd + self.c_rd
        elif op.startswith("ds_"):
            self.kind = "ds"
            if op.startswith("ds_read") or op.startswith("ds_bpermute") or op.startswith("ds_swizzle") or op.startswith("ds_permute"):
                wr = R[0]; rd = flat(R[1:])
            else:
                rd = flat(R); self.data_rd = flat(R[1:])
        elif op.startswith("buffer_") or op.startswith("global_"):
            self.kind = "vmem"
            islds = bool(re.search(r'\blds\b', rest)) or "_lds_" in op
            if "_load" in op and not islds:
                wr = R[0]; rd = flat(R[1:])
                if "d16" in op: rd = rd + R[0]
            elif islds:
                rd = flat(R) + [("m0", 0)]
            elif "atomic" in op and re.search(r'\bsc0\b', rest):
                rd = flat(R); wr = R[0]
            else:
                rd = flat(R)
                if op.startswith("buffer_store"): self.data_rd = R[0]
                elif op.startswith("global_store"): self.data_rd = R[1]
                self.wide = op.endswith("x4") or op.endswith("x3")
        elif op.startswith("s_load") or op in ("s_memtime", "s_memrealtime") or op.startswith("s_buffer_load"):
            self.kind = "smem"; wr = R[0]; rd = flat(R[1:])
        elif op.startswith("s_"):
            self.kind = "salu"
            if op in ("s_waitcnt", "s_nop", "s_barrier", "s_endpgm", "s_sleep", "s_setprio", "s_branch") or op.startswith("s_cbranch"):
                if "vcc" in op: rd = [("vcc", 0)]
                if "exec" in op: rd = [("exec", 0)]
            elif op.startswith("s_cmp") or op.startswith("s_bitcmp"):
                rd = flat(R)
            else:
                wr = R[0]; rd = flat(R[1:])
                if op in ("s_addk_i32", "s_mulk_i32") or op.startswith("s_cmov"): rd = rd + R[0]
                if "saveexec" in op: wr = wr + [("exec", 0)]; rd = rd + [("exec", 0)]
        elif op.startswith("v_"):
            self.kind = "valu"
            wr = R[0]; rd = flat(R[1:])
            if op.startswith("v_permlane") and "swap" in op: wr = R[0] + R[1]; rd = R[0] + R[1]
            if op.startswith("v_fmac") or op.startswith("v_dot2c") or op.startswith("v_writelane") or (self.dpp and "bound_ctrl" not in rest and op == "v_mov_b32"):
                rd = rd + R[0]
            if op in ("v_add_co_u32", "v_sub_co_u32", "v_addc_co_u32", "v_subb_co_u32", "v_mad_u64_u32"):
                wr = R[0] + R[1]; rd = flat(R[2:])
            if op.startswith("v_cmpx"): wr = wr + [("exec", 0)]
        else:
            raise ValueError("unknown instr " + text)
        self.rd = rd; self.wr = wr

class Prog:
    def __init__(self):
        self.ins = []
    def __call__(self, text, tok=None):
        for line in text.split("\n"):
            line = line.strip()
            if line: self.ins.append(I(line, tok))
        return self.ins[-1]
    def wait_tok(self, *toks):
        i = I("@wait"); i.tok = toks; self.ins.append(i)
    def reset(self):
        self.ins.append(I("@reset"))
    def extend(self, lst):
        for x in lst:
            if isinstance(x, I): self.ins.append(x)
            else: self(x)

def mk(text, tok=None): return I(text, tok)
def mkwait(*toks):
    i = I("@wait"); i.tok = toks; return i

def passes(ins):
    if "32x32x16" in ins.op: return 8
    if "16x16x32" in ins.op: return 4
    raise ValueError(ins.op)

def finalize(prog, verbose=False):
    out = []
    vm = []
    lg = []
    smem_out = []
    stats = dict(nops=0, nop_states=0, waits=0)
    hist = []
    def states_since(pred, limit):
        n = 0
        for h, w in reversed(hist):
            if pred(h): return n
            n += w
            if n >= limit: return limit
        return limit
    def push(i):
        out.append(i)
        if i.kind != "meta":
            w = 1
            if i.op == "s_nop": w = int(i.text.split()[1], 0) + 1
            hist.append((i, w))
            if len(hist) > 40: del hist[0]
    def do_wait(nvm, nlg):
        nonlocal vm, lg, smem_out
        parts = []
        if nvm is not None:
            nvm = min(nvm, 63); parts.append(f"vmcnt({nvm})"); vm = vm[len(vm) - nvm:] if nvm else []
        if nlg is not None:
            nlg = min(nlg, 15); parts.append(f"lgkmcnt({nlg})"); lg = lg[len(lg) - nlg:] if nlg else []
            if nlg == 0: smem_out = []
        push(I("s_waitcnt " + " ".join(parts))); stats["waits"] += 1
    def need(queue, regs=None, toks=None):
        best = None
        for idx, o in enumerate(queue):
            hit = False
            if regs and (o["wr"] & regs): hit = True
            if toks and o["tok"] in toks: hit = True
            if hit: best = len(queue) - 1 - idx
        return best
    for ins in prog.ins:
        if ins.op == "@reset":
            vm, lg, smem_out = [], [], []; hist.clear(); continue
        if ins.op == "@wait":
            a = need(vm, toks=set(ins.tok)); b = need(lg, toks=set(ins.tok))
            if b is not None and smem_out: b = 0
            if a is not None or b is not None: do_wait(a, b)
            continue
        if ins.kind == "meta":
            out.append(ins); continue
        if ins.op == "s_waitcnt":
            m = re.search(r'vmcnt\((\d+)\)', ins.text)
            if m:
                n = int(m.group(1)); vm = vm[max(0, len(vm) - n):] if n else []
            m = re.search(r'lgkmcnt\((\d+)\)', ins.text)
            if m:
                n = int(m.group(1))
                if n == 0: lg, smem_out = [], []
                elif not smem_out: lg = lg[max(0, len(lg) - n):]
            push(ins); continue
        touched = set(ins.rd) | set(ins.wr)
        a = need(vm, regs=touched); b = need(lg, regs=touched)
        if ins.kind == "vmem" and a is not None: a = need(vm, regs=set(ins.rd))
        if ins.kind == "ds" and b is not None: b = need(lg, regs=set(ins.rd))
        if any(o & touched for o in smem_out): b = 0
        if b is not None and smem_out: b = 0
        if a is not None or b is not None: do_wait(a, b)
        rd = set(ins.rd); wr = set(ins.wr); req = 0
        def chk(pred, n):
            nonlocal req
            s = states_since(pred, n)
            if s < n: req = max(req, n - s)
        isv = lambda h: h.kind == "valu"
        sg = lambda S: {r for r in S if r[0] in ("s", "vcc")}
        if ins.kind == "mfma":
            chk(lambda h: isv(h) and set(h.wr) & rd, 2)
            chk(lambda h: isv(h) and h.op.startswith("v_dot") and set(h.wr) & (rd | wr), 3)
            chk(lambda h: isv(h) and ("exec", 0) in h.wr, 4)
            for np_, n_ab, n_c in ((8, 12, 10), (4, 8, 6)):
                chk(lambda h: h.kind == "mfma" and passes(h) == np_ and set(h.wr) & set(ins.ab_rd), n_ab)
                chk(lambda h: h.kind == "mfma" and passes(h) == np_ and set(h.wr) & set(ins.c_rd) and not (h.wr == ins.c_rd and passes(h) == passes(ins)), n_c)
        else:
            if ins.kind in ("valu", "ds", "vmem"):
                for np_, n, nwar in ((8, 12, 7), (4, 8, 3)):
                    chk(lambda h: h.kind == "mfma" and passes(h) == np_ and set(h.wr) & (rd | wr), n)
                    if ins.kind == "valu":
                        chk(lambda h: h.kind == "mfma" and passes(h) == np_ and set(h.c_rd) & wr, nwar)
                if ins.op.startswith("v_dot"):
                    ops = ins.rd
                    cset = set(ins.wr) if ins.op.startswith("v_dot2c") else {ops[-1]}
                    abset = set(ops[:-1])
                    chk(lambda h: isv(h) and h.op == ins.op and set(h.wr) & abset, 3)
                    chk(lambda h: isv(h) and h.op.startswith("v_dot") and h.op != ins.op and set(h.wr) & (rd | wr), 3)
                else:
                    chk(lambda h: isv(h) and h.op.startswith("v_dot") and set(h.wr) & (rd | wr), 3)
            if ins.kind == "valu":
                if ins.op not in TRANS: chk(lambda h: h.op in TRANS and set(h.wr) & rd, 1)
                if ins.dpp:
                    chk(lambda h: set(h.wr) & rd and h.kind in ("valu",), 2)
                    chk(lambda h: isv(h) and ("exec", 0) in h.wr, 5)
                if ins.op.startswith("v_permlane"):
                    chk(lambda h: isv(h) and set(h.wr) & rd, 2)
                if ins.op in ("v_readfirstlane_b32", "v_readlane_b32"):
                    chk(lambda h: isv(h) and set(h.wr) & rd, 1)
                if ins.op in ("v_readlane_b32", "v_writelane_b32"):
                    chk(lambda h: isv(h) and sg(set(h.wr)) & rd, 4)
                chk(lambda h: isv(h) and sg(set(h.wr)) & rd, 2)
                chk(lambda h: h.wide and set(h.data_rd) & wr, 2)
            if ins.kind in ("ds", "vmem"):
                chk(lambda h: h.wide and set(h.data_rd) & wr, 1)
            if ins.kind == "vmem":
                chk(lambda h: isv(h) and sg(set(h.wr)) & rd, 5)
                if ("m0", 0) in rd: chk(lambda h: ("m0", 0) in h.wr, 1)
            if ins.kind == "salu":
                chk(lambda h: isv(h) and sg(set(h.wr)) & rd, 1)
        while req > 0:
            n = min(req, 16); i = I(f"s_nop {n-1}"); i.note = "auto before " + ins.text
            if verbose: print("nop", n, "before", ins.text)
            push(i); req -= n; stats["nops"] += 1; stats["nop_states"] += n
        push(ins)
        if ins.kind == "vmem": vm.append(dict(wr=set(ins.wr), tok=ins.tok))
        elif ins.kind == "ds": lg.append(dict(wr=set(ins.wr), tok=ins.tok))
        elif ins.kind == "smem": smem_out.append(set(ins.wr))
    return out, stats

LLVM = "bin/"
def sizes(ins_list):
    txt = '.amdgcn_target "amdgcn-amd-amdhsa--gfx950"\n.text\n' + "\n".join(i.text for i in ins_list if not (i.kind == "meta" and not i.op.endswith(":"))) + "\n"
    r = subprocess.run([LLVM + "llvm-mc", "-triple=amdgcn-amd-amdhsa", "-mcpu=gfx950", "--show-encoding"], input=txt, capture_output=True, text=True)
    if r.returncode != 0:
        print(r.stderr[:3000]); raise SystemExit(1)
    enc = [len(l.split("encoding:")[1].split(",")) for l in r.stdout.split("\n") if "encoding:" in l]
    real = [i for i in ins_list if i.kind != "meta"]
    assert len(enc) == len(real), (len(enc), len(real))
    for i, s in zip(real, enc): i.size = s

NO_E64 = ("v_readfirstlane_b32", "v_fmamk_f32", "v_fmaak_f32", "v_dot2c_f32_bf16", "v_accvgpr_mov_b32", "v_permlane32_swap_b32", "v_permlane16_swap_b32", "v_nop")
def align32(ins_list):
    sizes(ins_list)
    off = 0; fixed = 0; left = 0; win = []
    for i in ins_list:
        if i.kind == "meta":
            m = re.match(r'\.p2alignl? (\d+)', i.op)
            if m:
                a = 1 << int(m.group(1)); off = (off + a - 1) // a * a
                if a >= 32: win = []
            continue
        if off % 32 == 0: win = []
        if i.size == 8 and off % 32 == 28:
            cand = [w for w in win if w.kind == "valu" and w.size == 4 and w.op not in NO_E64 and not w.dpp]
            if cand:
                w = cand[-1]
                parts = w.text.split(None, 1)
                w.text = re.sub(r'_e32$', '', parts[0]) + "_e64 " + parts[1]; w.size = 8
                off += 4; fixed += 1; win = []
            else:
                left += 1
        win.append(i)
        off += i.size
        if off % 32 < i.size and off % 32 != 0: win = []
    return fixed, left, off

def weave(p, mfmas, fillers, per_gap=None, lead=0):
    raise NotImplementedError
```

```python
import sys, struct, math
from collections import deque
from asmlib import *

KN = "recurrent_scan__spectral_gfnet__glu_gated_glu__prompt_kernel"
def f32(x): return "0x%08x" % struct.unpack("<I", struct.pack("<f", x))[0]

WS_E  = 0x0000000
WS_QF = 0x0001000
WS_ZF = 0x0002000
WS_PF = 0x0004000
WS_Q  = 0x0100000
WS_Z  = 0x0300000
WS_P  = 0x0500000
WS_ST = 0x2000000
WS_SIZE = 0x10000000
OOB = 0x40000000

XN0, F1X, HX, MISC = 106496, 98304, 131072, 147456

sX, sG, sU, sD, sW, sO = "s[4:7]", "s[8:11]", "s[12:15]", "s[16:19]", "s[20:23]", "s[24:27]"
sWAVE, sRB, sJ, sTAG, sMI, sNI, sM0, sSO, sEP = "s3", "s28", "s29", "s30", "s31", "s32", "s33", "s34", "s35"
sT = [f"s{i}" for i in range(36, 44)]
sMASK = "s[44:45]"
sLC = [f"s{i}" for i in range(46, 53)]
sPD = [f"s{i}" for i in range(53, 59)]
sPF = [f"s{i}" for i in range(59, 65)]
sC = "s65"; sSPIN = "s66"; sSO2 = "s67"
STAMP0 = 70

def cost(i):
    if i.kind == "meta": return 1 if i.op == "@wait" else 0
    return 2 if i.op in TRANS else 1

class Sched:
    def __init__(self, p, cap=6):
        self.p = p; self.cap = cap; self.q = deque(); self.gap = 0
    def add(self, items, delay=0):
        first = True
        for x in items:
            if isinstance(x, str): x = mk(x)
            self.q.append((self.gap + delay if first else 0, x)); first = False
    def mfma(self, text, fixed=(), used=0):
        self.p(text)
        for f in fixed:
            if isinstance(f, str): f = mk(f)
            self.p.extend([f]); used += cost(f)
        while self.q and self.q[0][0] <= self.gap and used + cost(self.q[0][1]) <= self.cap:
            f = self.q.popleft()[1]; self.p.extend([f]); used += cost(f)
        self.gap += 1
    def drain(self):
        while self.q: self.p.extend([self.q.popleft()[1]])

class Gen:
    def __init__(self, **o):
        self.o = dict(stamps=False, spin=200000, cap=6, PF=2, mapping="r8")
        self.o.update(o)
        self.p = Prog(); self.tailcode = Prog(); self.nstamp = 0; self.npoll = 0; self.stamp_names = {}
    def stamp(self, name, real=False):
        if not self.o["stamps"]: return
        n = self.nstamp; self.nstamp += 1
        assert STAMP0 + 2 * n + 1 < 102
        self.stamp_names.setdefault(self.role, []).append(name)
        self.p(f"{'s_memrealtime' if real else 's_memtime'} s[{STAMP0+2*n}:{STAMP0+2*n+1}]")
    def dump_stamps(self):
        if not self.o["stamps"]: return
        p = self.p
        p("s_waitcnt vmcnt(0) lgkmcnt(0)")
        p(f"s_lshl_b32 {sT[0]}, s2, 2"); p(f"s_add_u32 {sT[0]}, {sT[0]}, {sWAVE}"); p(f"s_lshl_b32 {sT[0]}, {sT[0]}, 7"); p(f"s_add_u32 {sT[0]}, {sT[0]}, {WS_ST}")
        p("s_mov_b64 exec, 1"); p("v_mov_b32 v1, 0")
        for n in range(self.nstamp):
            p(f"v_mov_b32 v2, s{STAMP0+2*n}")
            p(f"buffer_store_dword v2, v1, {sW}, {sT[0]} offen offset:{4*n}")
    def poll_check(self, vF, load_text, mask=sMASK):
        n = self.npoll; self.npoll += 1
        L = [mk(f"v_cmp_ne_u32 vcc, {sTAG}, {vF}"), mk(f"s_and_b64 vcc, vcc, {mask}"), mk(f"s_cbranch_scc1 L_slow{n}"), mk(f"L_ok{n}:")]
        t = self.tailcode
        t.reset()
        t(f"L_slow{n}:"); t(f"s_mov_b32 {sSPIN}, {self.o['spin']}")
        t(f"L_spin{n}:"); t(load_text); t("s_waitcnt vmcnt(0)")
        t(f"v_cmp_ne_u32 vcc, {sTAG}, {vF}"); t(f"s_and_b64 vcc, vcc, {mask}"); t(f"s_cbranch_scc0 L_ok{n}")
        t(f"s_sub_u32 {sSPIN}, {sSPIN}, 1"); t(f"s_cmp_lg_u32 {sSPIN}, 0"); t(f"s_cbranch_scc1 L_spin{n}")
        t(f"s_branch L_ok{n}")
        return L

    def srd(self, s, lo, hi, size, delta=0):
        b = int(s[2:s.index(":")]); p = self.p
        if delta: p(f"s_sub_u32 s{b}, {lo}, {delta}"); p(f"s_subb_u32 s{b+1}, {hi}, 0")
        else:
            if f"s{b}" != lo: p(f"s_mov_b32 s{b}, {lo}"); p(f"s_mov_b32 s{b+1}, {hi}")
        p(f"s_mov_b32 s{b+2}, {size + delta}"); p(f"s_mov_b32 s{b+3}, 0x00020000")

    def entry(self):
        p = self.p; self.role = "glu"
        p("s_cmp_ge_u32 s2, 256"); p("s_cbranch_scc1 L_done")
        self.stamp("start_real", real=True); self.stamp("start")
        p("s_load_dwordx2 s[4:5], s[0:1], 0")
        p("s_load_dwordx4 s[36:39], s[0:1], 8")
        p("s_load_dwordx4 s[40:43], s[0:1], 32")
        p("s_load_dwordx4 s[56:59], s[0:1], 48")
        p("s_load_dwordx2 s[20:21], s[0:1], 72")
        p("v_lshrrev_b32 v1, 6, v0"); p("v_lshlrev_b32 v2, 7, v0"); p(f"v_readfirstlane_b32 {sWAVE}, v1")
        p("v_and_b32 v0, 63, v0")
        p("s_and_b32 s50, s2, 7"); p("s_lshr_b32 s51, s2, 3")
        p("s_waitcnt lgkmcnt(0)")
        p(f"s_load_dword {sEP}, s[20:21], {WS_E}")
        self.srd(sW, "s20", "s21", WS_SIZE)
        p("s_cmp_ge_u32 s51, 28"); p("s_cbranch_scc1 L_f2")

    def tag(self):
        p = self.p
        p(f"s_mul_i32 {sTAG}, {sEP}, 0x9e3779b1"); p(f"s_add_u32 {sTAG}, {sTAG}, 0x7f4a7c15")

    def code_prefetch(self, label, nbytes, vtmp="a255"):
        p = self.p
        p("s_getpc_b64 s[68:69]")
        p(f"v_min_u32 v2, {nbytes}, v2")
        p(f"global_load_dword {vtmp}, v2, s[68:69]")

    def pi_of(self, dst, src, t1, t2):
        p = self.p
        p(f"v_lshrrev_b32 {t1}, 1, {src}"); p(f"v_sub_u32 {t2}, 64, {t1}")
        p(f"v_cmp_eq_u32 vcc, 1, {src}"); p(f"v_cndmask_b32 {t2}, {t2}, 32, vcc")
        p(f"v_and_b32 {dst}, 1, {src}"); p(f"v_cmp_eq_u32 vcc, 1, {dst}"); p(f"v_cndmask_b32 {dst}, {t1}, {t2}, vcc")

    def glu(self):
        p = self.p; o = self.o; self.role = "glu"
        vL16, vL0, vSGN, vTAG, vROW = "v24", "v25", "v26", "v27", "v28"
        FR, ACC, HP, RAW, TF = 32, 48, 112, 144, 200
        HF = 224
        self.code_prefetch("L_glu", o.get("glu_bytes", 28000))
        p("s_and_b32 s52, s50, 1"); p("s_lshl_b32 s52, s52, 2")
        p(f"s_lshr_b32 {sJ}, s51, 3"); p(f"s_add_u32 {sJ}, {sJ}, s52")
        p(f"s_and_b32 {sRB}, s51, 7"); p(f"s_add_u32 s53, {sRB}, s52")
        p("s_cmp_ge_u32 s51, 24"); p(f"s_cselect_b32 {sJ}, 3, {sJ}"); p(f"s_cselect_b32 {sRB}, s53, {sRB}")
        p("s_lshr_b32 s52, s50, 1"); p("s_lshl_b32 s52, s52, 3"); p(f"s_add_u32 {sRB}, {sRB}, s52")
        self.srd(sX, "s4", "s5", 1835008)
        p(f"s_and_b32 s52, {sJ}, 1"); p("s_lshl_b32 s52, s52, 3"); p(f"s_lshl_b32 s53, {sWAVE}, 4"); p("s_add_u32 s52, s52, s53")
        p("v_lshrrev_b32 v1, 3, v0"); p("v_add_u32 v8, s52, v1"); p("v_xor_b32 v9, 8, v8")
        p("v_and_b32 v7, 7, v0")
        p(f"s_mul_i32 s53, {sRB}, 896")
        for g in range(2):
            self.pi_of("v4", f"v{8+g}", "v5", "v6")
            p("v_mul_u32_u24 v4, 28672, v4"); p(f"v_lshl_add_u32 v4, v7, 4, v4")
            for l in range(7):
                r = RAW + 28 * g + 4 * l
                p(f"buffer_load_dwordx4 v[{r}:{r+3}], v4, {sX}, s53 offen offset:{128*l}")
        self.srd(sG, "s40", "s41", 1605632); self.srd(sU, "s42", "s43", 1605632, delta=2048)
        self.srd(sD, "s56", "s57", 1605632); self.srd(sO, "s58", "s59", 1835008)
        p(f"s_and_b32 {sMI}, {sWAVE}, 1"); p(f"s_lshr_b32 {sNI}, {sWAVE}, 1"); p(f"s_lshl_b32 {sM0}, {sWAVE}, 12")
        p(f"v_lshlrev_b32 {vL16}, 4, v0")
        p(f"v_cmp_eq_u32 vcc, 0, v0"); p(f"v_mov_b32 {vL0}, {OOB}"); p(f"v_cndmask_b32 {vL0}, {vL0}, 0, vcc")
        p("v_lshrrev_b32 v1, 1, v7")
        p("v_lshlrev_b32 v2, 1, v1")
        p("v_and_b32 v4, 1, v1"); p("v_lshlrev_b32 v4, 9, v4")
        p("v_lshrrev_b32 v5, 2, v7"); p("v_lshl_add_u32 v4, v5, 11, v4")
        p("v_and_b32 v5, 1, v7"); p("v_lshl_add_u32 v4, v5, 3, v4")
        p(f"v_add_u32 v4, {XN0}, v4")
        for g in range(2):
            p(f"v_lshrrev_b32 v5, 5, v{8+g}"); p("v_mul_u32_u24 v5, 28672, v5"); p("v_add_u32 v5, v5, v4")
            p(f"v_and_b32 v6, 31, v{8+g}"); p("v_xor_b32 v6, v6, v2"); p(f"v_lshl_add_u32 v{8+g}, v6, 4, v5")
        p("v_lshrrev_b32 v3, 3, v0"); p("v_and_b32 v4, 2, v3"); p("v_lshlrev_b32 v4, 1, v4"); p("v_xor_b32 v5, v7, v4"); p("v_xor_b32 v6, 2, v5")
        p(f"s_lshl_b32 s52, {sNI}, 5"); p(f"s_add_u32 s52, s52, {sMI}"); p("s_mul_i32 s52, s52, 3584"); p(f"s_lshl_b32 s53, {sJ}, 9"); p("s_add_u32 s52, s52, s53")
        p("v_mul_u32_u24 v1, 7168, v3"); p("v_add_u32 v1, s52, v1")
        p("v_lshl_add_u32 v10, v5, 4, v1"); p("v_lshl_add_u32 v12, v6, 4, v1")
        p(f"v_add_u32 v11, {16*3584-1024}, v10"); p(f"v_add_u32 v13, {16*3584-1024}, v12")
        p(f"s_lshl_b32 s52, {sJ}, 3"); p(f"s_add_u32 s52, s52, {sWAVE}"); p("s_mul_i32 s52, s52, 28672")
        p("v_mul_u32_u24 v1, 896, v3"); p("v_add_u32 v1, s52, v1"); p("v_lshl_add_u32 v17, v5, 4, v1")
        for i in range(1, 4): p(f"v_add_u32 v{17+i}, {i*(7168-1024)}, v17")
        p("v_bfe_u32 v3, v0, 4, 1"); p("v_lshrrev_b32 v4, 5, v0"); p("v_bfe_u32 v5, v0, 2, 2"); p("v_and_b32 v6, 3, v0")
        p("v_lshl_add_u32 v1, v3, 1, v4"); p("v_lshlrev_b32 v1, 10, v1"); p("v_lshl_add_u32 v1, v5, 7, v1"); p("v_lshl_add_u32 v1, v6, 3, v1")
        p("v_and_b32 v2, 2, v5"); p("v_add_u32 v7, v2, v3"); p(f"v_xor_b32 v7, {sWAVE}, v7")
        p("v_lshl_add_u32 v14, v7, 5, v1"); p("v_add_u32 v15, 0x10000, v14"); p("v_add_u32 v16, 0x20000, v14")
        p("v_lshl_add_u32 v1, v4, 2, v5"); p("v_lshlrev_b32 v1, 7, v1")
        p("v_lshl_add_u32 v3, v3, 2, v6"); p("v_and_b32 v6, 1, v3"); p("v_lshrrev_b32 v3, 1, v3"); p("v_lshl_add_u32 v3, v6, 2, v3")
        p("v_lshlrev_b32 v3, 3, v3"); p("v_lshlrev_b32 v2, 5, v2"); p("v_xor_b32 v3, v3, v2"); p("v_add_u32 v29, v1, v3")
        p(f"s_lshl_b32 s52, {sNI}, 6"); p("v_xor_b32 v21, s52, v29"); p("v_add_u32 v22, 0x10000, v21"); p("v_add_u32 v23, 0x20000, v21")
        p("v_and_b32 v1, 31, v0"); p("v_bfe_u32 v2, v1, 2, 1"); p("v_lshrrev_b32 v3, 3, v1"); p("v_and_b32 v4, 3, v1")
        p("v_lshl_add_u32 v4, v3, 2, v4"); p("v_lshl_add_u32 v4, v2, 4, v4"); p(f"s_lshl_b32 s52, {sJ}, 5"); p("v_add_u32 v4, s52, v4")
        p(f"v_lshlrev_b32 {vSGN}, 31, v4"); p(f"v_or_b32 {vSGN}, 1.0, {vSGN}")
        p(f"v_cvt_f32_u32 v5, {sNI}"); p("v_mul_f32 v5, 0x3e800000, v5")
        p(f"s_xor_b32 s52, {sNI}, 1"); p("v_or_b32 v2, s52, v4"); p("v_cmp_eq_u32 vcc, 0, v2")
        p("v_mov_b32 v3, 224"); p("v_cndmask_b32 v4, v4, v3, vcc"); p("v_cndmask_b32 v5, v5, 0, vcc")
        p("v_mov_b32 v30, -1"); p("v_cndmask_b32 v30, v30, 0, vcc")
        p("v_cvt_f32_u32 v4, v4"); p(f"v_mul_f32 v4, {f32(1/448)}, v4")
        p("v_lshrrev_b32 v2, 5, v0"); p("v_lshlrev_b32 v2, 4, v2"); p("v_cvt_f32_u32 v2, v2"); p("v_fma_f32 v5, v2, v4, v5")
        for kap in range(14):
            g, par = kap >> 1, kap & 1
            for e2 in range(4):
                d0 = 32 * g + par + 4 * e2
                p(f"v_fmamk_f32 v1, v4, {f32(d0)}, v5"); p(f"v_fmamk_f32 v2, v4, {f32(d0+2)}, v5")
                p("v_cos_f32 v1, v1"); p("v_cos_f32 v2, v2"); p("s_nop 0")
                p(f"v_cvt_pk_bf16_f32 v{TF+4*kap+e2}, v1, v2")
        p(f"s_lshl_b32 s52, {sMI}, 5"); p("v_and_b32 v1, 31, v0"); p("v_add_u32 v1, s52, v1")
        self.pi_of(vROW, "v1", "v2", "v3")
        p(f"v_cvt_f32_u32 v4, {vROW}"); p("v_mul_f32 v4, 0x3c800000, v4")
        p("v_lshrrev_b32 v2, 5, v0"); p("v_lshlrev_b32 v2, 1, v2")
        p(f"v_lshlrev_b32 v7, 31, {vROW}")
        for tl in range(2):
            p(f"s_xor_b32 s52, {sMI}, {tl}"); p("s_lshl_b32 s52, s52, 4"); p("v_add_u32 v3, s52, v2")
            p("v_cmp_eq_u32 vcc, 0, v3"); p("v_cndmask_b32 v6, 0, v7, vcc")
            p("v_cvt_f32_u32 v3, v3"); p("v_fmaak_f32 v5, v3, v4, 0x3e000000")
            for kk in range(2):
                for x in range(4):
                    dp = 8 * kk + 4 * (x >> 1) + (x & 1)
                    p(f"v_fmamk_f32 v1, v4, {f32(dp)}, v5"); p("v_cos_f32 v3, v1"); p("v_sin_f32 v1, v1")
                    if dp == 0: p("v_xor_b32 v3, v3, v6")
                    p("v_cvt_pk_bf16_f32 v1, v1, v3"); p(f"v_accvgpr_write_b32 a{HF+8*tl+4*kk+x}, v1")
        self.tag(); p(f"v_mov_b32 {vTAG}, {sTAG}")
        p(f"s_mov_b32 {sC}, 0xbfb8aa3b")
        self.stamp("setup")
        for g in range(2):
            U = 32 + 56 * g; R = RAW + 28 * g
            for k in range(28):
                p(f"v_lshlrev_b32 v{U+2*k}, 16, v{R+k}"); p(f"v_and_b32 v{U+2*k+1}, 0xffff0000, v{R+k}")
                if k == 0:
                    p(f"v_pk_mul_f32 v[4:5], v[{U}:{U+1}], v[{U}:{U+1}]")
                else:
                    p(f"v_pk_add_f32 v[2:3], v[{U if k == 1 else 2}:{U+1 if k == 1 else 3}], v[{U+2*k}:{U+2*k+1}]")
                    p(f"v_pk_fma_f32 v[4:5], v[{U+2*k}:{U+2*k+1}], v[{U+2*k}:{U+2*k+1}], v[4:5]")
            p("v_add_f32 v2, v2, v3"); p("v_add_f32 v4, v4, v5")
            for dpp in ("quad_perm:[1,0,3,2]", "quad_perm:[2,3,0,1]", "row_half_mirror"):
                p(f"v_add_f32_dpp v2, v2, v2 {dpp} row_mask:0xf bank_mask:0xf"); p(f"v_add_f32_dpp v4, v4, v4 {dpp} row_mask:0xf bank_mask:0xf")
            p(f"v_mul_f32 v2, {f32(1/448)}, v2"); p(f"v_mul_f32 v4, {f32(1/448)}, v4")
            p("v_fma_f32 v4, -v2, v2, v4"); p("v_max_f32 v4, 0, v4")
            p("v_cvt_pk_bf16_f32 v2, v2, v4"); p("v_and_b32 v4, 0xffff0000, v2"); p("v_lshlrev_b32 v2, 16, v2")
            p(f"v_add_f32 v4, {f32(1e-5)}, v4"); p("v_cvt_pk_bf16_f32 v4, v4, v4"); p("v_lshlrev_b32 v4, 16, v4")
            p("v_sqrt_f32 v4, v4"); p("v_cvt_pk_bf16_f32 v4, v4, v4"); p("v_lshlrev_b32 v4, 16, v4")
            p("v_rcp_f32 v4, v4"); p("v_mul_f32 v5, -1.0, v2") ; p("v_mul_f32 v5, v5, v4")
            for l in range(7):
                for k in range(4 * l, 4 * l + 4):
                    p(f"v_pk_fma_f32 v[{U+2*k}:{U+2*k+1}], v[{U+2*k}:{U+2*k+1}], v[4:5], v[4:5] op_sel:[0,0,1] op_sel_hi:[1,0,1]")
                b = U + 8 * l; r = R + 4 * l
                p(f"v_cvt_pk_bf16_f32 v{r}, v{b}, v{b+2}"); p(f"v_cvt_pk_bf16_f32 v{r+1}, v{b+4}, v{b+6}")
                p(f"v_cvt_pk_bf16_f32 v{r+2}, v{b+1}, v{b+3}"); p(f"v_cvt_pk_bf16_f32 v{r+3}, v{b+5}, v{b+7}")
                p(f"ds_write2st64_b64 v{8+g}, v[{r}:{r+1}], v[{r+2}:{r+3}] offset0:{8*l} offset1:{8*l+2}")
        p("v_lshrrev_b32 v5, 5, v0"); p("v_lshlrev_b32 v5, 5, v5"); p(f"v_xor_b32 v5, v5, {vL16}")
        p(f"s_mul_i32 s52, {sMI}, 28672"); p(f"s_add_u32 s53, s52, {XN0}"); p(f"s_sub_u32 s52, {XN0+28672}, s52")
        p("v_add_u32 v1, s53, v5"); p("v_add_u32 v3, s52, v5"); p("v_xor_b32 v2, 64, v1"); p("v_xor_b32 v4, 64, v3")
        p("s_waitcnt lgkmcnt(0)"); p("s_barrier")
        self.stamp("ln")
        NST = 42
        def dma_group(st):
            L = [mk(f"s_add_u32 m0, {sM0}, {(st % 9) * 16384}")]
            if st < 28:
                q, s = divmod(st, 7)
                L.append(mk(f"s_mov_b32 {sSO}, {64*s*3584 + q*128}"))
                L += [mk(f"buffer_load_dwordx4 v{10+i}, {sG if i < 2 else sU}, {sSO} offen offset:{i*1024} lds", tok=("dma", st)) for i in range(4)]
            else:
                s = st - 28
                if s < 10: u, h = s >> 1, s & 1
                else: u, h = 5 + (s & 1), (s - 10) >> 1
                L.append(mk(f"s_add_u32 {sSO}, {sLC[u]}, {h*114688}"))
                L += [mk(f"buffer_load_dwordx4 v{17+i}, {sD}, {sSO} offen offset:{i*1024} lds", tok=("dma", st)) for i in range(4)]
            return L
        dq = deque(); self.issued = 0
        def want(upto):
            while self.issued < min(upto, NST):
                dq.extend(dma_group(self.issued)); self.issued += 1
        def take_dma():
            L = []
            while dq:
                f = dq.popleft(); L.append(f)
                if f.kind == "vmem": break
            return L
        def xread(t, kap):
            return mk(f"ds_read_b128 a[{112*t+4*kap}:{112*t+4*kap+3}], v{1 + 2*t + ((kap >> 1) & 1)} offset:{kap*1024}")
        S = Sched(p, o["cap"])
        want(3)
        for k in range(3): p.extend([xread(0, k)])
        for kap in range(28):
            a = ACC + 16 * (kap // 14); t = TF + 4 * (kap % 14)
            fx = []
            if kap + 3 < 28: fx.append(xread(0, kap + 3))
            fx.append(xread(1, kap))
            fx += take_dma()
            S.mfma(f"v_mfma_f32_32x32x16_bf16 v[{a}:{a+15}], a[{4*kap}:{4*kap+3}], v[{t}:{t+3}], {'0' if kap % 14 == 0 else f'v[{a}:{a+15}]'}", fx)
        self.gemm2_scalars()
        for r in range(16): p(f"v_fma_f32 v{ACC+r}, v{ACC+16+r}, {vSGN}, v{ACC+r}")
        for r in range(8): p(f"v_cvt_pk_bf16_f32 v{FR+r}, v{ACC+2*r}, v{ACC+2*r+1}")
        p(f"s_lshl_b32 s36, {sWAVE}, 11"); p(f"s_add_u32 s36, s36, {F1X}"); p(f"v_add_u32 v5, s36, {vL16}"); p("v_xor_b32 v6, 2048, v5")
        p(f"ds_write_b128 v5, v[{FR}:{FR+3}]"); p(f"ds_write_b128 v5, v[{FR+4}:{FR+7}] offset:1024")
        p("s_waitcnt lgkmcnt(0)"); p("s_barrier")
        p(f"ds_read_b128 v[{FR+8}:{FR+11}], v6"); p(f"ds_read_b128 v[{FR+12}:{FR+15}], v6 offset:1024")
        want(5)
        for k in range(4):
            S.mfma(f"v_mfma_f32_32x32x16_bf16 v[{ACC}:{ACC+15}], a[{HF+4*k}:{HF+4*k+3}], v[{FR+4*k}:{FR+4*k+3}], {'0' if k == 0 else f'v[{ACC}:{ACC+15}]'}", take_dma() + take_dma())
        p("v_lshrrev_b32 v5, 5, v0"); p("v_mul_u32_u24 v5, 114688, v5"); p("v_and_b32 v6, 31, v0"); p("v_lshl_add_u32 v5, v6, 2, v5")
        p(f"s_mul_i32 s36, {sMI}, {16*57344}"); p(f"s_lshl_b32 s37, {sJ}, 1"); p(f"s_add_u32 s37, s37, {sNI}"); p("s_lshl_b32 s37, s37, 12")
        p("s_add_u32 s36, s36, s37"); p(f"s_lshl_b32 s37, {sRB}, 7"); p("s_add_u32 s36, s36, s37"); p(f"s_add_u32 s36, s36, {WS_Q}")
        for x in range(8):
            p(f"v_cvt_pk_bf16_f32 v{FR+x}, v{ACC+2*x}, v{ACC+2*x+1}")
            p(f"s_add_u32 {sSO2}, s36, {(4*(x >> 1) + (x & 1))*57344}")
            p(f"buffer_store_dword v{FR+x}, v5, {sW}, {sSO2} offen sc1", tok="qst")
        p(f"s_lshl_b32 s37, {sJ}, 1"); p(f"s_add_u32 s37, s37, {sMI}"); p("s_lshl_b32 s37, s37, 5"); p(f"s_add_u32 s37, s37, {sRB}")
        p("s_lshl_b32 s37, s37, 1"); p(f"s_add_u32 s37, s37, {sNI}"); p("s_lshl_b32 s37, s37, 2"); p(f"s_add_u32 s37, s37, {WS_QF}")
        self.stamp("f1")
        PF = o["PF"]; NB = PF + 1
        def reads1(n):
            st, k = divmod(n, 4); a = (st % 9) * 16384 + k * 4096; b = FR + 4 * (n % NB)
            return [mk(f"ds_read_b64_tr_b16 v[{b+2*i}:{b+2*i+1}], v{14 + (a >> 16)} offset:{(a & 0xffff) + i*512}") for i in range(2)]
        def epilogue(q):
            L = []
            for t in range(2):
                a = ACC + 32 * (q & 1) + 16 * t
                for half in range(2):
                    E = range(4 * half, 4 * half + 4)
                    L += [f"v_mul_f32 v{a+e}, {sC}, v{a+e}" for e in E]
                    L += [f"v_exp_f32 v{a+e}, v{a+e}" for e in E]
                    L += [f"v_add_f32 v{a+e}, 1.0, v{a+e}" for e in E]
                    L += [f"v_rcp_f32 v{a+e}, v{a+e}" for e in E]
                    L += [f"v_mul_f32 v{a+e}, v{a+e}, v{a+8+e}" for e in E]
                    L += [f"v_cvt_pk_bf16_f32 v{HP+8*q+4*t+2*half+e//2}, v{a+4*half+e}, v{a+4*half+e+1}" for e in (0, 2)]
            return L
        LEAD = o.get("lead", 5)
        p.wait_tok(("dma", 0)); p("s_barrier")
        p(".p2alignl 5, 0xbf800000")
        for n in range(PF): p.extend(reads1(n))
        want(LEAD + 1)
        for n in range(112):
            q, kap = divmod(n, 28)
            fixed = [[], []]; nn = n + PF
            if nn % 4 == 0:
                st = nn // 4
                fixed[0] += [mkwait(("dma", st)), mk("s_barrier")]
                if st <= 26: want(st + LEAD + 1)
                if st == 4: S.add([mkwait("qst"), f"buffer_store_dword {vTAG}, {vL0}, {sW}, s37 offen sc1"])
            if nn < 112:
                r = reads1(nn); fixed[0].append(r[0]); fixed[1].append(r[1])
            fixed[1] += take_dma()
            if kap == 1 and q > 0: S.add(epilogue(q - 1))
            if kap == 27: S.drain()
            b = FR + 4 * (n % NB)
            for t in range(2):
                a = ACC + 32 * (q & 1) + 16 * t
                S.mfma(f"v_mfma_f32_32x32x16_bf16 v[{a}:{a+15}], v[{b}:{b+3}], a[{112*t+4*kap}:{112*t+4*kap+3}], {'0' if kap == 0 else f'v[{a}:{a+15}]'}", fixed[t], used=t)
        assert not dq
        self.stamp("g1")
        p(f"s_lshl_b32 s36, {sMI}, 14"); p(f"s_add_u32 s36, s36, {HX}"); p(f"v_add_u32 v2, s36, {vL16}")
        p(f"s_lshl_b32 s36, {sWAVE}, 10"); p("v_add_u32 v3, s36, v2"); p("v_xor_b32 v4, 0x4000, v3")
        ep = epilogue(3)
        wr = lambda q, t: f"ds_write_b128 v{3+t}, v[{HP+8*q+4*t}:{HP+8*q+4*t+3}] offset:{q*4096}"
        p.extend(ep[:44]); p(wr(3, 0))
        others = [wr(q, t) for q in range(3) for t in range(2)]
        for i, x in enumerate(ep[44:]):
            p(x)
            if i % 7 == 3 and others: p(others.pop())
        assert not others
        p(wr(3, 1))
        p("s_waitcnt lgkmcnt(0)"); p("s_barrier")
        self.stamp("hx")
        PF2 = 3; NB2 = 4
        def reads2(n):
            u, k = divmod(n, 16); b = FR + 4 * (n % NB2)
            if u < 5:
                st = 28 + 2 * u + (k >> 3); a = (st % 9) * 16384 + (k & 7) * 2048; v = 21 + (a >> 16)
            else:
                a = (k >> 3) * 32768 + (k & 7) * 2048; v = 5 + (u - 5)
            return [mk(f"ds_read_b64_tr_b16 v[{b+2*i}:{b+2*i+1}], v{v} offset:{(a & 0xffff) + i*1024}") for i in range(2)]
        href = lambda k: mk(f"ds_read_b128 a[{4*k}:{4*k+3}], v2 offset:{k*1024}")
        want(28 + LEAD + 1)
        for n in range(PF2): p.extend([href(n)] + reads2(n))
        SEL = RAW; XT = RAW + 8; vZF = "v7"; PK = RAW + 16
        fl = []
        fl += [f"s_and_b32 s36, {sJ}, 1", f"s_xor_b32 s36, s36, {sNI}", "s_lshl_b32 s36, s36, 6", f"s_lshl_b32 s38, {sNI}, 14", "s_add_u32 s38, s38, 32768",
               "v_xor_b32 v6, s36, v29", "v_add_u32 v6, s38, v6", "v_xor_b32 v5, 64, v6"]
        fl += ["v_lshrrev_b32 v8, 5, v0", "v_and_b32 v9, 31, v0", "v_lshlrev_b32 v8, 2, v8", "v_sub_u32 v8, v9, v8", "v_and_b32 v9, 1, v8", "v_lshlrev_b32 v9, 4, v9",
               "v_mov_b32 v1, 0x3f80", "v_lshlrev_b32 v9, v9, v1", "v_and_b32 v8, -2, v8"]
        for kk in range(2):
            for x in range(4):
                fl += [f"v_cmp_eq_u32 vcc, {16*kk + 8*(x >> 1) + 2*(x & 1)}, v8", "s_nop 1", f"v_cndmask_b32 v{SEL+4*kk+x}, 0, v9, vcc"]
        fl += [f"v_and_b32 v{TF+r}, v{TF+r}, v30" for r in range(56)]
        fl += [f"v_lshrrev_b32 v8, 16, {vSGN}", f"v_and_b32 v9, 0xffff0000, v{TF}", "v_or_b32 v8, v8, v9", f"s_xor_b32 s36, {sNI}, 1", "v_lshrrev_b32 v9, 5, v0",
               "v_or_b32 v9, s36, v9", "v_cmp_eq_u32 vcc, 0, v9", "s_nop 1", f"v_cndmask_b32 v{TF}, v{TF}, v8, vcc"]
        fl += [f"v_mul_u32_u24 v31, 28672, {vROW}", "v_lshrrev_b32 v8, 5, v0", "v_lshl_add_u32 v31, v8, 5, v31", f"s_mul_i32 s36, {sRB}, 896", f"s_lshl_b32 s38, {sJ}, 6",
               "s_add_u32 s36, s36, s38", f"s_mul_i32 s38, {sNI}, 448", "s_add_u32 s36, s36, s38", "v_add_u32 v31, s36, v31",
               f"buffer_load_dwordx4 v[{XT}:{XT+3}], v31, {sX}, 0 offen", f"buffer_load_dwordx4 v[{XT+4}:{XT+7}], v31, {sX}, 0 offen offset:16"]
        fl += [f"s_lshl_b32 s39, {sMI}, 8", f"s_add_u32 s39, s39, {WS_ZF}", "v_lshlrev_b32 v12, 2, v0",
               f"s_lshl_b32 s40, {sRB}, 1", f"s_add_u32 s40, s40, {sMI}", "s_lshl_b32 s40, s40, 1", f"s_add_u32 s40, s40, {sNI}", "s_mul_i32 s40, s40, 14336", f"s_add_u32 s40, s40, {WS_Z}",
               f"s_lshl_b32 s41, {sWAVE}, 2", "s_lshr_b32 s41, 0x0876, s41", "s_and_b32 s41, s41, 15", "s_lshl_b32 s41, s41, 14",
               "v_bfe_u32 v8, v0, 1, 4", "v_lshrrev_b32 v9, 5, v0", "v_lshlrev_b32 v9, 1, v9", "v_bfe_u32 v10, v0, 2, 2", "v_xor_b32 v9, v9, v10",
               "v_and_b32 v10, 1, v0", "v_lshl_add_u32 v9, v9, 1, v10", "v_lshlrev_b32 v9, 4, v9", "v_lshl_add_u32 v9, v8, 7, v9", "v_add_u32 v10, s41, v9", "v_xor_b32 v11, 32, v10"]
        low = deque(mk(x) for x in fl)
        zload = f"buffer_load_dword {vZF}, v12, {sW}, s39 offen sc1"
        def zdma():
            L = []
            for g in range(4):
                L += [mk(f"s_add_u32 m0, s41, {g*4096}"), mk(f"s_add_u32 {sSO}, s40, {g*4096}")]
                L += [mk(f"buffer_load_dwordx4 {vL16}, {sW}, {sSO} offen offset:{i*1024} sc1 lds", tok="zd") for i in range(4 if g < 3 else 2)]
            return L
        for n in range(112):
            u, k = divmod(n, 16)
            fx = []; nn = n + PF2
            if nn % 8 == 0 and nn < 96:
                uu, kk = divmod(nn, 16)
                if uu < 5: toks = [28 + nn // 8]
                else: toks = [38 + 2 * (kk >> 3), 39 + 2 * (kk >> 3)]
                fx += [mkwait(*[("dma", s) for s in toks]), mk("s_barrier")]
                st = 28 + nn // 8
                want(min(st + LEAD + 1, 35) if st < 31 else st + LEAD + 1)
            if nn < 112: fx += reads2(nn)
            if nn < 16: fx.append(href(nn))
            if n % 2 == 1 or u >= 5: fx += take_dma()
            if k == 2 and u > 0:
                a = ACC + 16 * ((u - 1) & 1)
                L = [f"v_cvt_pk_bf16_f32 v{PK+r}, v{a+2*r}, v{a+2*r+1}" for r in range(8)]
                L.insert(4, mk(f"buffer_store_dwordx4 v[{PK}:{PK+3}], {vL16}, {sW}, {sPD[u-1]} offen sc1", tok=("ps", u - 1)))
                L.append(mk(f"buffer_store_dwordx4 v[{PK+4}:{PK+7}], {vL16}, {sW}, {sPD[u-1]} offen offset:1024 sc1", tok=("ps", u - 1)))
                S.add(L)
            if k == 12 and u >= 3:
                S.add([mkwait(("ps", u - 3)), f"buffer_store_dword {vTAG}, {vL0}, {sW}, {sPF[u-3]} offen sc1"])
            if n == 64:
                while low: S.add([low.popleft()])
                S.add([zload, f"s_mov_b64 {sMASK}, -1"])
            if n == 80:
                S.drain(); assert not dq
                p.extend(self.poll_check(vZF, zload))
                dq.extend(zdma())
            a = ACC + 16 * (u & 1); b = FR + 4 * (n % NB2)
            if not S.q and low:
                S.add([low.popleft() for _ in range(min(3, len(low)))])
            S.mfma(f"v_mfma_f32_32x32x16_bf16 v[{a}:{a+15}], v[{b}:{b+3}], a[{4*k}:{4*k+3}], {'0' if k == 0 else f'v[{a}:{a+15}]'}", fx, used=1)
        S.drain(); assert not dq
        self.stamp("g2")
        Y = ACC
        p.wait_tok(("ps", 4)); p(f"buffer_store_dword {vTAG}, {vL0}, {sW}, {sPF[4]} offen sc1")
        p.wait_tok("zd")
        ZF = 64; EO = ACC + 32
        for kap in range(14): p(f"ds_read_b128 a[{ZF+4*kap}:{ZF+4*kap+3}], v{10 + (kap & 1)} offset:{(kap >> 1)*2048}")
        p.wait_tok(("ps", 5)); p(f"buffer_store_dword {vTAG}, {vL0}, {sW}, {sPF[5]} offen sc1")
        pre = [f"s_mul_i32 s36, {sRB}, 7", f"s_add_u32 s36, s36, {sJ}", "s_lshl_b32 s36, s36, 2", f"s_add_u32 s36, s36, {sWAVE}",
               "s_lshl_b32 s39, s36, 5", f"s_add_u32 s39, s39, {WS_PF}", "s_mul_i32 s40, s36, 14336", f"s_add_u32 s40, s40, {WS_P}",
               f"s_lshl_b32 s44, 1, {sJ}", "s_xor_b32 s44, s44, 0x7f", "s_mov_b32 s45, 0", "v_min_u32 v12, 28, v12",
               f"s_lshl_b32 s36, {sWAVE}, 12", f"s_add_u32 s36, s36, {MISC}", f"v_add_u32 v8, s36, {vL16}",
               f"s_lshl_b32 s36, {sMI}, 12", f"s_lshl_b32 s38, {sNI}, 11", "s_add_u32 s36, s36, s38", f"s_add_u32 s36, s36, {MISC}", f"v_add_u32 v9, s36, {vL16}", "v_xor_b32 v13, 0x1000, v9"]
        S.add(pre)
        pload = f"buffer_load_dword {vZF}, v12, {sW}, s39 offen sc1"
        for kap in range(14):
            a = EO + 16 * (kap & 1); t = TF + 4 * kap
            S.mfma(f"v_mfma_f32_32x32x16_bf16 v[{a}:{a+15}], a[{ZF+4*kap}:{ZF+4*kap+3}], v[{t}:{t+3}], {'0' if kap < 2 else f'v[{a}:{a+15}]'}")
        S.drain()
        PM = HP
        for r in range(8):
            e0, o0 = EO + 2 * r, EO + 16 + 2 * r
            p(f"v_pk_add_f32 v[2:3], v[{e0}:{e0+1}], v[{o0}:{o0+1}]")
            p(f"v_pk_add_f32 v[4:5], v[{e0}:{e0+1}], v[{o0}:{o0+1}] neg_lo:[0,1] neg_hi:[0,1]")
            p(f"v_cvt_pk_bf16_f32 v{PM+r}, v2, v3"); p(f"v_cvt_pk_bf16_f32 v{PM+8+r}, v4, v5")
            if r % 4 == 3:
                p(f"ds_write_b128 v8, v[{PM+r-3}:{PM+r}] offset:{(r >> 2)*1024}"); p(f"ds_write_b128 v8, v[{PM+8+r-3}:{PM+8+r}] offset:{2048+(r >> 2)*1024}")
        p(pload)
        p("s_waitcnt lgkmcnt(0)"); p("s_barrier")
        p(f"s_or_b32 s36, s2, {sWAVE}"); p("s_cmp_eq_u32 s36, 0"); p(f"s_cselect_b32 s36, {WS_E}, {OOB}"); p(f"s_add_u32 s38, {sEP}, 1"); p("v_mov_b32 v1, s38")
        G = 128
        for i in range(8):
            tl, part, kk = i >> 2, (i >> 1) & 1, i & 1
            p(f"ds_read_b128 a[{G+4*i}:{G+4*i+3}], {'v9' if tl == 0 else 'v13'} offset:{part*8192 + kk*1024}")
        p(f"buffer_store_dword v1, {vL0}, {sW}, s36 offen sc1")
        SA = ACC + 16
        for i in range(8):
            tl, part, kk = i >> 2, (i >> 1) & 1, i & 1
            p(f"v_mfma_f32_32x32x16_bf16 v[{SA}:{SA+15}], a[{G+4*i}:{G+4*i+3}], a[{HF+8*tl+4*kk}:{HF+8*tl+4*kk+3}], {'0' if i == 0 else f'v[{SA}:{SA+15}]'}")
        self.stamp("f3")
        p.extend(self.poll_check(vZF, pload))
        self.stamp("pflag")
        PA = 160
        for i in range(6):
            p(f"s_add_u32 s36, {sJ}, {1+i}"); p("s_cmp_ge_u32 s36, 7"); p("s_cselect_b32 s38, 7, 0"); p("s_sub_u32 s36, s36, s38")
            p("s_lshl_b32 s36, s36, 11"); p("s_add_u32 s36, s36, s40")
            for h in range(2):
                p(f"buffer_load_dwordx4 a[{PA+8*i+4*h}:{PA+8*i+4*h+3}], {vL16}, {sW}, s36 offen offset:{h*1024} sc1")
        for i in range(12):
            h = i & 1
            p(f"v_mfma_f32_32x32x16_bf16 v[{Y}:{Y+15}], v[{SEL+4*h}:{SEL+4*h+3}], a[{PA+4*i}:{PA+4*i+3}], v[{Y}:{Y+15}]")
        self.stamp("psum")
        Tm = EO
        for half in range(2):
            E = range(8 * half, 8 * half + 8)
            for e in E: p(f"v_mul_f32 v{Tm+e}, {sC}, v{Y+e}")
            for e in E: p(f"v_exp_f32 v{Tm+e}, v{Tm+e}")
            for e in E: p(f"v_mul_f32 v{Y+e}, v{Y+e}, v{SA+e}")
            for e in E: p(f"v_add_f32 v{Tm+e}, 1.0, v{Tm+e}")
            for e in E: p(f"v_rcp_f32 v{Tm+e}, v{Tm+e}")
            for e in E: p(f"v_lshlrev_b32 v{SA+e}, 16, v{XT+e//2}" if e % 2 == 0 else f"v_and_b32 v{SA+e}, 0xffff0000, v{XT+e//2}")
            for e in E: p(f"v_fma_f32 v{Y+e}, v{Y+e}, v{Tm+e}, v{SA+e}")
            for e in range(4): p(f"v_cvt_pk_bf16_f32 v{PK+4*half+e}, v{Y+8*half+2*e}, v{Y+8*half+2*e+1}")
            p(f"buffer_store_dwordx4 v[{PK+4*half}:{PK+4*half+3}], v31, {sO}, 0 offen offset:{16*half}")
        self.stamp("end"); self.stamp("end_real", real=True)
        self.dump_stamps()
        p("s_endpgm")

    def gemm2_scalars(self):
        p = self.p
        packs = []
        for j in range(7):
            LA, LB = j >> 1, (j + 7) >> 1
            order = [c % 7 for c in range(LB + 1, LB + 8) if c % 7 not in (LA, LB)] + [LA, LB]
            packs.append(sum(c << (4 * i) for i, c in enumerate(order)))
        p(f"s_mov_b32 s36, {packs[0]}")
        for j in range(1, 7):
            p(f"s_cmp_eq_u32 {sJ}, {j}"); p(f"s_cselect_b32 s36, {packs[j]}, s36")
        p(f"s_mul_i32 s37, {sRB}, 28"); p(f"s_add_u32 s37, s37, {sMI}")
        p(f"s_lshl_b32 s40, {sJ}, 11"); p(f"s_add_u32 s40, s40, {WS_P}"); p(f"s_lshl_b32 s41, {sJ}, 2"); p(f"s_add_u32 s41, s41, {WS_PF}")
        for u in range(7):
            p(f"s_bfe_u32 s38, s36, {(4*u) | (4 << 16)}"); p(f"s_lshl_b32 {sLC[u]}, s38, 7")
            if u < 5:
                p("s_lshl_b32 s38, s38, 1"); p(f"s_add_u32 s38, s38, {sNI}")
            elif u == 5:
                p(f"s_mul_i32 s38, {sNI}, 7"); p(f"s_add_u32 s38, s38, {sJ}"); p("s_xor_b32 s38, s38, 1")
            else: continue
            p("s_cmp_ge_u32 s38, 7"); p("s_cselect_b32 s39, 26, 0"); p("s_lshl_b32 s38, s38, 2"); p("s_sub_u32 s38, s38, s39"); p("s_add_u32 s38, s38, s37")
            p(f"s_mul_i32 {sPD[u]}, s38, 14336"); p(f"s_add_u32 {sPD[u]}, {sPD[u]}, s40")
            p(f"s_lshl_b32 {sPF[u]}, s38, 5"); p(f"s_add_u32 {sPF[u]}, {sPF[u]}, s41")

    def f2(self):
        p = self.p; o = self.o; self.role = "f2"
        p.reset(); self.nstamp = 2 if o["stamps"] else 0
        if o["stamps"]: self.stamp_names["f2"] = ["start_real", "start"]
        p(".p2alignl 6, 0xbf800000")
        p("L_f2:")
        p("s_waitcnt lgkmcnt(0)")
        self.code_prefetch("L_f2", o.get("f2_bytes", 16000))
        sP, sSTEP, sTA, sTB = sRB, sJ, sMI, sNI
        sWR, sWI = sG, sU
        vL16, vL0, vTAG = "v24", "v25", "v27"
        p(f"s_lshl_b32 {sP}, s50, 2"); p(f"s_add_u32 {sP}, {sP}, s51"); p(f"s_sub_u32 {sP}, {sP}, 28")
        self.srd(sWR, "s36", "s37", 921600); self.srd(sWI, "s38", "s39", 921600)
        p(f"s_cmp_eq_u32 {sP}, 0"); p(f"s_cselect_b32 {sSTEP}, 32, 64"); p("s_cselect_b64 s[46:47], -1, 0")
        self.tag(); p(f"v_mov_b32 {vTAG}, {sTAG}")
        p(f"v_lshlrev_b32 {vL16}, 4, v0")
        p(f"v_cmp_eq_u32 vcc, 0, v0"); p(f"v_mov_b32 {vL0}, {OOB}"); p(f"v_cndmask_b32 {vL0}, {vL0}, 0, vcc")
        p("v_lshrrev_b32 v1, 5, v0"); p("v_and_b32 v2, 31, v0")
        for i in range(8):
            p(f"s_lshl_b32 s52, {sWAVE}, 3"); p(f"s_add_u32 s52, s52, {i}"); p(f"s_mul_i32 s53, s52, {sSTEP}"); p(f"s_add_u32 s53, s53, {sP}")
            p("s_sub_u32 s54, 2048, s53"); p("s_cmp_eq_u32 s53, 0"); p("s_cselect_b32 s54, 1024, s54")
            p("s_mul_i32 s53, s53, 450"); p("s_mul_i32 s54, s54, 450"); p("s_and_b32 s53, s53, -16"); p("s_and_b32 s54, s54, -16")
            p("v_mov_b32 v4, s53"); p("v_mov_b32 v5, s54"); p("v_cmp_eq_u32 vcc, 0, v1"); p("v_cndmask_b32 v4, v5, v4, vcc"); p("v_lshl_add_u32 v4, v2, 4, v4")
            p("s_lshl_b32 m0, s52, 10"); p(f"buffer_load_dwordx4 v4, {sWR}, 0 offen lds")
            p("s_add_u32 m0, m0, 32768"); p(f"buffer_load_dwordx4 v4, {sWI}, 0 offen lds")
        MF, MI, IN = 0, 32, 64
        p("v_and_b32 v3, 1, v0"); p("v_bfe_u32 v4, v0, 1, 4")
        for mu in range(2):
            p(f"v_add_u32 v5, {16*mu}, v4"); p(f"v_mul_lo_u32 v6, v5, {sSTEP}"); p(f"v_add_u32 v6, {sP}, v6")
            p("v_cvt_f32_u32 v7, v3"); p("v_mul_f32 v7, 0x3e800000, v7")
            p("v_xor_b32 v8, 1, v3"); p("v_or_b32 v8, v8, v6"); p("v_cmp_eq_u32 vcc, 0, v8")
            p("v_mov_b32 v9, 1024"); p("v_cndmask_b32 v6, v6, v9, vcc"); p("v_cndmask_b32 v7, v7, 0, vcc")
            p("v_cvt_f32_u32 v6, v6"); p("v_mul_f32 v6, 0x3a000000, v6")
            p("v_lshlrev_b32 v8, 2, v1"); p("v_cvt_f32_u32 v8, v8"); p("v_fma_f32 v7, v8, v6, v7")
            p("v_and_b32 v8, 1, v5"); p("v_cvt_f32_u32 v8, v8"); p("v_cndmask_b32 v12, 0, v8, s[46:47]"); p("v_sub_f32 v10, 1.0, v12")
            p("v_cndmask_b32 v11, 1.0, 0, s[46:47]")
            for kap in range(4):
                for x in range(4):
                    p(f"v_fmamk_f32 v8, v6, {f32(8*kap+x)}, v7"); p("v_cos_f32 v9, v8"); p("v_sin_f32 v8, v8"); p("v_mul_f32 v13, v9, v12")
                    p("v_fma_f32 v8, v8, v11, v13"); p("v_mul_f32 v9, v9, v10"); p("v_cvt_pk_bf16_f32 v8, v9, v8"); p(f"v_accvgpr_write_b32 a{MF+16*mu+4*kap+x}, v8")
        for nu in range(2):
            p(f"v_add_u32 v5, {16*nu}, v4"); p("v_cvt_f32_u32 v6, v5"); p("v_mul_f32 v6, 0x3a000000, v6")
            p("v_cvt_f32_u32 v7, v3"); p("v_mul_f32 v7, 0xbe800000, v7"); p("v_cndmask_b32 v7, v7, 0, s[46:47]")
            p(f"v_lshlrev_b32 v8, 1, v1"); p(f"v_mul_lo_u32 v8, v8, {sSTEP}"); p(f"v_add_u32 v14, {sP}, v8"); p("v_cvt_f32_u32 v8, v14"); p("v_fma_f32 v7, v8, v6, v7")
            p(f"v_cvt_f32_u32 v8, {sSTEP}"); p("v_mul_f32 v6, v6, v8")
            p("v_cvt_f32_u32 v8, v3"); p("v_cndmask_b32 v11, 1.0, v8, s[46:47]"); p("v_sub_f32 v8, 1.0, v8"); p("v_cndmask_b32 v10, 1.0, v8, s[46:47]")
            p("v_lshlrev_b32 v12, 31, v5"); p("v_xor_b32 v12, -1.0, v12")
            for x in range(16):
                sig = 16 * (x >> 3) + 4 * ((x >> 1) & 3) + (x & 1)
                p(f"v_fmamk_f32 v8, v6, {f32(sig)}, v7"); p("v_cos_f32 v9, v8"); p("v_sin_f32 v8, v8")
                if x == 0: p("v_cmp_eq_u32 vcc, 0, v14"); p("v_cndmask_b32 v8, v8, v12, vcc")
                p(f"v_mul_f32 v9, v9, v{10+(x & 1)}"); p(f"v_mul_f32 v8, v8, v{10+(x & 1)}")
                p("v_cvt_pk_bf16_f32 v8, v9, -v8"); p(f"v_accvgpr_write_b32 a{MI+16*nu+x}, v8")
        CA, CD, AA, AB = 32, 96, 128, 192
        PR = 14
        p("v_bfe_u32 v5, v0, 2, 1"); p("v_bfe_u32 v6, v0, 3, 2"); p("v_and_b32 v7, 3, v0"); p("v_lshl_add_u32 v7, v6, 2, v7"); p("v_lshl_add_u32 v7, v5, 4, v7")
        p(f"s_lshl_b32 s52, {sWAVE}, 5"); p("v_add_u32 v7, s52, v7")
        p("v_cmp_eq_u32 s[48:49], 0, v7")
        p(f"s_lshl_b32 s52, {sP}, 1"); p("s_and_b32 s53, s52, 15"); p("s_sub_u32 s54, 0, s52"); p("s_and_b32 s54, s54, 15"); p("s_add_u32 s54, s54, 512")
        p("v_lshlrev_b32 v5, 11, v1"); p("v_lshl_add_u32 v6, v7, 1, v5")
        p("v_add_u32 v8, s53, v6"); p("v_add_u32 v9, s54, v6")
        p("v_mov_b32 v6, 448"); p("v_cndmask_b32 v6, 0, v6, s[48:49]"); p("v_add_u32 v10, v8, v6"); p("v_add_u32 v11, v9, v6")
        p(f"s_mov_b32 s52, {f32(2/2048/448)}"); p(f"s_cmp_eq_u32 {sP}, 0"); p(f"s_cselect_b32 s52, {f32(4/2048/448)}, s52")
        p("v_mov_b32 v12, s52"); p("v_mul_f32 v13, 0.5, v12"); p("v_cndmask_b32 v13, v12, v13, s[48:49]")
        p("v_cndmask_b32 v26, v13, 0, s[48:49]")
        p(f"v_or_b32 v6, {sP}, v1"); p("v_cmp_eq_u32 s[50:51], 0, v6")
        p(f"s_lshl_b32 s52, {sWAVE}, 14"); p("s_add_u32 s52, s52, 65536"); p(f"v_add_u32 v28, s52, {vL16}")
        for r in range(AA, AA + 12): p(f"v_mov_b32 v{r}, 0")
        p("s_waitcnt vmcnt(0)"); p("s_barrier")
        def coef(x, job):
            sig = 16 * (x >> 3) + 4 * ((x >> 1) & 3) + (x & 1); off = sig * 1024 + (256 if job else 0)
            a, b, c, d = AA, AA + 1, AA + 2, AA + 3
            dst = CA + 4 * x if job == 0 else AA + 16
            sa, sb = ("v13", "v26") if job == 0 else ("v12", "v12")
            p(f"ds_read_u16_d16_hi v{a}, v8 offset:{off}"); p(f"ds_read_u16_d16_hi v{b}, v8 offset:{off+32768}")
            p(f"ds_read_u16_d16_hi v{c}, v9 offset:{off}"); p(f"ds_read_u16_d16_hi v{d}, v9 offset:{off+32768}")
            if job == 0:
                p(f"ds_read_u16_d16_hi v{a+4}, v10 offset:{off}"); p(f"ds_read_u16_d16_hi v{b+4}, v10 offset:{off+32768}")
                p(f"ds_read_u16_d16_hi v{c+4}, v11 offset:{off}"); p(f"ds_read_u16_d16_hi v{d+4}, v11 offset:{off+32768}")
            p(f"v_add_f32 v{dst}, v{a}, v{c}"); p(f"v_sub_f32 v{dst+1}, v{b}, v{d}"); p(f"v_add_f32 v{dst+2}, v{b}, v{d}"); p(f"v_sub_f32 v{dst+3}, v{c}, v{a}")
            if job == 0:
                p(f"v_add_f32 v{CD+2*x}, v{a+4}, v{c+4}"); p(f"v_sub_f32 v{CD+2*x+1}, v{b+4}, v{d+4}")
            if x == 0:
                pr = PR + (6 if job else 0)
                p(f"v_cndmask_b32 v{pr}, v{dst}, v{a}, s[50:51]"); p(f"v_cndmask_b32 v{pr+1}, v{dst}, v{c}, s[50:51]")
                p(f"v_cndmask_b32 v{pr+2}, v{dst+2}, v{b}, s[50:51]"); p(f"v_cndmask_b32 v{pr+3}, v{dst+2}, v{d}, s[50:51]")
                p(f"v_cndmask_b32 v{dst+1}, v{dst+1}, 0, s[50:51]"); p(f"v_cndmask_b32 v{dst+3}, v{dst+3}, 0, s[50:51]")
                p(f"v_mul_f32 v{pr}, v{pr}, {sa}"); p(f"v_mul_f32 v{pr+1}, v{pr+1}, {sa}"); p(f"v_mul_f32 v{pr+2}, v{pr+2}, {sb}"); p(f"v_mul_f32 v{pr+3}, v{pr+3}, {sb}")
                if job == 0:
                    p(f"v_cndmask_b32 v{pr+4}, v{CD}, v{a+4}, s[50:51]"); p(f"v_cndmask_b32 v{pr+5}, v{CD}, v{c+4}, s[50:51]")
                    p(f"v_cndmask_b32 v{CD+1}, v{CD+1}, 0, s[50:51]")
                    p(f"v_mul_f32 v{pr+4}, v{pr+4}, {sa}"); p(f"v_mul_f32 v{pr+5}, v{pr+5}, {sa}")
            p(f"v_mul_f32 v{dst}, v{dst}, {sa}"); p(f"v_mul_f32 v{dst+1}, v{dst+1}, {sa}"); p(f"v_mul_f32 v{dst+2}, v{dst+2}, {sb}"); p(f"v_mul_f32 v{dst+3}, v{dst+3}, {sb}")
            if job == 0:
                p(f"v_mul_f32 v{CD+2*x}, v{CD+2*x}, {sa}"); p(f"v_mul_f32 v{CD+2*x+1}, v{CD+2*x+1}, {sa}")
            else:
                p(f"ds_write_b128 v28, v[{dst}:{dst+3}] offset:{x*1024}")
        for x in range(16): coef(x, 0)
        for x in range(16): coef(x, 1)
        p("v_lshlrev_b32 v8, 9, v1"); p("v_lshl_add_u32 v8, v2, 2, v8")
        p("v_lshlrev_b32 v9, 2, v0")
        p(f"s_mul_i32 s52, {sP}, 57344"); p(f"s_lshl_b32 s53, {sWAVE}, 13"); p("s_add_u32 s52, s52, s53"); p(f"s_add_u32 s52, s52, {WS_Q}")
        p("s_add_u32 s53, s52, 32768"); p(f"s_cmp_eq_u32 {sWAVE}, 3"); p(f"s_cselect_b32 s53, {OOB}, s53"); p("s_cselect_b64 s[48:49], 0, -1")
        p(f"s_lshr_b32 s56, {sP}, 4"); p(f"s_lshl_b32 s54, {sWAVE}, 1"); p("s_add_u32 s54, s54, s56"); p("s_lshl_b32 s54, s54, 8"); p(f"s_add_u32 s54, s54, {WS_QF}")
        p("s_add_u32 s55, s54, 2048")
        p("s_mul_i32 s56, s56, 28672"); p(f"s_and_b32 s57, {sP}, 15"); p("s_lshl_b32 s57, s57, 7"); p("s_add_u32 s56, s56, s57")
        p(f"s_lshl_b32 s57, {sWAVE}, 11"); p("s_add_u32 s56, s56, s57"); p(f"s_add_u32 s56, s56, {WS_Z}")
        p("s_add_u32 s57, s56, 8192"); p(f"s_cmp_eq_u32 {sWAVE}, 3"); p(f"s_cselect_b32 s57, {OOB}, s57")
        p("v_lshrrev_b32 v5, 3, v0"); p("v_and_b32 v6, 7, v0"); p("v_mul_u32_u24 v10, 57344, v5"); p("v_lshl_add_u32 v10, v6, 4, v10")
        p(f"s_lshl_b32 s58, {sWAVE}, 13"); p("s_add_u32 s58, s58, 131072")
        p("v_and_b32 v7, 3, v5"); p("v_lshlrev_b32 v7, 1, v7"); p("v_xor_b32 v7, v7, v6"); p("v_lshlrev_b32 v7, 4, v7"); p("v_lshl_add_u32 v7, v5, 7, v7"); p("v_add_u32 v13, s58, v7")
        p(f"s_bfe_u32 s59, {sP}, {1 | (2 << 16)}")
        p("v_lshlrev_b32 v5, 1, v1"); p("v_xor_b32 v5, s59, v5"); p("v_and_b32 v6, 3, v4"); p("v_xor_b32 v5, v5, v6"); p("v_lshl_add_u32 v5, v5, 1, v3")
        p("v_lshlrev_b32 v5, 4, v5"); p("v_lshl_add_u32 v5, v4, 7, v5"); p("v_add_u32 v11, s58, v5"); p("v_xor_b32 v12, 32, v11")
        p(f"s_lshl_b32 s59, {sP}, 2"); p(f"s_add_u32 s59, s59, {sWAVE}"); p("s_lshl_b32 s59, s59, 2"); p(f"s_add_u32 s59, s59, {WS_ZF}")
        p(f"s_mov_b64 {sMASK}, -1")
        self.stamp("setup")
        def qloads(job):
            for part in range(2):
                p(f"s_add_u32 {sSO}, s{52+job}, {part*4096}")
                for kap in range(4):
                    for i in range(4):
                        p(f"buffer_load_dword a{IN+32*job+16*part+4*kap+i}, v8, {sW}, {sSO} offen offset:{(8*kap+i)*128} sc1")
        for job in range(2):
            ld = f"buffer_load_dword v{5+job}, v9, {sW}, s{54+job} offen sc1"
            p(ld); p.extend(self.poll_check(f"v{5+job}", ld, sMASK if job == 0 else "s[48:49]"))
            if job == 0: self.stamp("qflag")
            qloads(job)
        S = Sched(p, o["cap"])
        def fwd(job):
            A = AA if job == 0 else AB
            for part in range(2):
                for mu in range(2):
                    a = A + 32 * part + 16 * mu
                    for kap in range(4):
                        b = IN + 32 * job + 16 * part + 4 * kap
                        S.mfma(f"v_mfma_f32_32x32x16_bf16 v[{a}:{a+15}], a[{MF+16*mu+4*kap}:{MF+16*mu+4*kap+3}], a[{b}:{b+3}], {'0' if kap == 0 else f'v[{a}:{a+15}]'}")
        def mul(job):
            A = AA if job == 0 else AB; L = []
            for x in range(16):
                fr, fi = f"v[{A+2*x}:{A+2*x+1}]", f"v[{A+32+2*x}:{A+32+2*x+1}]"
                al, be = f"v[{CA+4*x}:{CA+4*x+1}]", f"v[{CA+4*x+2}:{CA+4*x+3}]"
                de = f"v[{CD+2*x}:{CD+2*x+1}]" if job == 0 else al
                g0, g1 = ("v[2:3]", "v[4:5]") if x % 2 == 0 else ("v[6:7]", "v[30:31]")
                if x == 0:
                    pr = PR + (6 if job else 0)
                    ar, br = f"v[{pr}:{pr+1}]", f"v[{pr+2}:{pr+3}]"; dr = f"v[{pr+4}:{pr+5}]" if job == 0 else ar
                    m2, m3 = "", ""
                else:
                    ar, br, dr = al, be, de; m2, m3 = " op_sel_hi:[1,0]", " op_sel_hi:[1,0,1]"
                rot = " op_sel:[1,1,0] op_sel_hi:[0,1,1]"
                L += [f"v_pk_mul_f32 {g0}, {fr}, {ar}{m2}", f"v_pk_mul_f32 {g1}, {fr}, {br}{m2}",
                      f"v_pk_fma_f32 {g0}, {fr}, {al}, {g0}{rot} neg_lo:[1,0,0]", f"v_pk_fma_f32 {g1}, {fr}, {be}, {g1}{rot} neg_lo:[1,0,0]",
                      f"v_pk_fma_f32 {g0}, {fi}, {br}, {g0}{m3} neg_lo:[1,0,0] neg_hi:[1,0,0]", f"v_pk_fma_f32 {g1}, {fi}, {dr}, {g1}{m3}",
                      f"v_pk_fma_f32 {g0}, {fi}, {be}, {g0}{rot} neg_hi:[1,0,0]", f"v_pk_fma_f32 {g1}, {fi}, {de}, {g1}{rot} neg_lo:[1,0,0]"]
                a0 = int(g0[2:g0.index(":")]); a1 = int(g1[2:g1.index(":")])
                L += [f"v_cvt_pk_bf16_f32 v{A+x}, v{a0}, v{a0+1}", f"v_cvt_pk_bf16_f32 v{A+32+x}, v{a1}, v{a1+1}"]
                if job == 0: L.append(f"ds_read_b128 v[{CA+4*x}:{CA+4*x+3}], v28 offset:{x*1024}")
            return L
        OB = CD
        def outp(job, ti):
            A = AA if job == 0 else AB; part, nu = ti >> 1, ti & 1
            c = A + 16 + 32 * (ti & 1); ob = OB + 16 * (ti & 1); L = []
            for par in range(2):
                L += [f"v_cvt_pk_bf16_f32 v{ob+4*par+e}, v{c+4*e+par}, v{c+4*e+2+par}" for e in range(4)]
                L.append(mk(f"ds_write_b128 v{11+par}, v[{ob+4*par}:{ob+4*par+3}] offset:{ti*2048}"))
            for h in range(2): L.append(f"ds_read_b128 v[{ob+8+4*h}:{ob+8+4*h+3}], v13 offset:{ti*2048+h*1024}")
            for h in range(2):
                L.append(f"s_add_u32 {sSO}, s{56+job}, {(16*nu+8*h)*57344 + part*14336}")
                L.append(mk(f"buffer_store_dwordx4 v[{ob+8+4*h}:{ob+8+4*h+3}], v10, {sW}, {sSO} offen sc1"))
            return L
        def inv(job):
            A = AA if job == 0 else AB
            for ti in range(4):
                part, nu = ti >> 1, ti & 1; c = A + 16 + 32 * (ti & 1)
                if ti >= 2: p.extend(outp(job, ti - 2))
                for kap in range(4):
                    g = A + 32 * part + 4 * kap
                    S.mfma(f"v_mfma_f32_32x32x16_bf16 v[{c}:{c+15}], v[{g}:{g+3}], a[{MI+16*nu+4*kap}:{MI+16*nu+4*kap+3}], {'0' if kap == 0 else f'v[{c}:{c+15}]'}")
            for ti in (2, 3): p.extend(outp(job, ti))
        fwd(0); self.stamp("fwdA")
        S.add(mul(0), delay=2); fwd(1); S.drain(); self.stamp("mulA")
        S.add(mul(1)); inv(0); S.drain(); self.stamp("mulB")
        inv(1); self.stamp("invB")
        p("s_waitcnt vmcnt(0)")
        p(f"buffer_store_dword {vTAG}, {vL0}, {sW}, s59 offen sc1")
        self.stamp("end"); self.stamp("end_real", real=True)
        self.dump_stamps()
        p("s_endpgm")

    def build(self):
        self.entry(); self.glu(); self.f2()
        p = self.p
        p.ins += self.tailcode.ins
        p.reset(); p("L_done:"); p("s_endpgm")
        ins, st = finalize(p, self.o.get("verbose", False))
        al = align32(ins)
        hdr = open("recurrent_scan__spectral_gfnet__glu_gated_glu__prompt.s.ref").read().split("; Override")[0]
        head = hdr + "; @launch grid=(256,1,1) block=(256,1,1) lds=163840\n" + "\n".join(
            ['.amdgcn_target "amdgcn-amd-amdhsa--gfx950"', ".text", f".globl {KN}", ".p2align 8", f".type {KN},@function", f"{KN}:"])
        tail = [".fill 64, 4, 0xbf800000", '.section .rodata,"a"', ".p2align 6", f".amdhsa_kernel {KN}",
                "  .amdhsa_next_free_vgpr 512", "  .amdhsa_next_free_sgpr 102", "  .amdhsa_accum_offset 256",
                "  .amdhsa_group_segment_fixed_size 0", "  .amdhsa_kernarg_size 80", "  .amdhsa_user_sgpr_count 2",
                "  .amdhsa_user_sgpr_kernarg_segment_ptr 1", "  .amdhsa_system_sgpr_workgroup_id_x 1",
                "  .amdhsa_float_denorm_mode_32 3", ".end_amdhsa_kernel"]
        body = [("" if i.kind == "meta" else "    ") + i.text for i in ins]
        off = 0; f2off = None
        for i in ins:
            if i.kind == "meta":
                if i.op == "L_f2:": f2off = off
                m = re.match(r'\.p2alignl? (\d+)', i.op)
                if m: a = 1 << int(m.group(1)); off = (off + a - 1) // a * a
            else: off += i.size
        self.info = dict(stats=st, align=al, f2off=f2off, total=off)
        return head + "\n" + "\n".join(body + tail) + "\n"

def generate(**o):
    g = Gen(**o); g.build()
    o2 = dict(o); o2["glu_bytes"] = (g.info["f2off"] - 256) & ~3; o2["f2_bytes"] = (g.info["total"] - g.info["f2off"] - 64) & ~3
    g = Gen(**o2); s = g.build()
    return s, g

if __name__ == "__main__":
    o = {}
    out = sys.argv[1] if len(sys.argv) > 1 else "k.s"
    for a in sys.argv[2:]:
        k, v = a.split("="); o[k] = eval(v)
    s, g = generate(**o)
    open(out, "w").write(s)
    print(g.info, g.stamp_names)
```

```python
import sys, struct, math
from collections import deque
from asmlib import *

KN = "recurrent_scan__spectral_gfnet__glu_gated_glu__prompt_kernel"
def f32(x): return "0x%08x" % struct.unpack("<I", struct.pack("<f", x))[0]

WS_E  = 0x0000000
WS_QF = 0x0001000
WS_ZF = 0x0002000
WS_PF = 0x0004000
WS_Q  = 0x0100000
WS_Z  = 0x0300000
WS_P  = 0x0500000
WS_ST = 0x2000000
WS_SIZE = 0x10000000
OOB = 0x40000000

XN0, F1X, HX, MISC = 106496, 98304, 131072, 147456

sX, sG, sU, sD, sW, sO = "s[4:7]", "s[8:11]", "s[12:15]", "s[16:19]", "s[20:23]", "s[24:27]"
sWAVE, sRB, sJ, sTAG, sMI, sNI, sM0, sSO, sEP = "s3", "s28", "s29", "s30", "s31", "s32", "s33", "s34", "s35"
sT = [f"s{i}" for i in range(36, 44)]
sMASK = "s[44:45]"
sLC = [f"s{i}" for i in range(46, 53)]
sPD = [f"s{i}" for i in range(53, 59)]
sPF = [f"s{i}" for i in range(59, 65)]
sC = "s65"; sSPIN = "s66"; sSO2 = "s67"
STAMP0 = 70

def cost(i):
    if i.kind == "meta": return 1 if i.op == "@wait" else 0
    return 2 if i.op in TRANS else 1

class Sched:
    def __init__(self, p, cap=6):
        self.p = p; self.cap = cap; self.q = deque(); self.gap = 0
    def add(self, items, delay=0):
        first = True
        for x in items:
            if isinstance(x, str): x = mk(x)
            self.q.append((self.gap + delay if first else 0, x)); first = False
    def mfma(self, text, fixed=(), used=0):
        self.p(text)
        for f in fixed:
            if isinstance(f, str): f = mk(f)
            self.p.extend([f]); used += cost(f)
        while self.q and self.q[0][0] <= self.gap and used + cost(self.q[0][1]) <= self.cap:
            f = self.q.popleft()[1]; self.p.extend([f]); used += cost(f)
        self.gap += 1
    def drain(self):
        while self.q: self.p.extend([self.q.popleft()[1]])

class Gen:
    def __init__(self, **o):
        self.o = dict(stamps=False, spin=200000, cap=6, PF=2, mapping="r8")
        self.o.update(o)
        self.p = Prog(); self.tailcode = Prog(); self.nstamp = 0; self.npoll = 0; self.stamp_names = {}
    def stamp(self, name, real=False):
        enc = self.o.get("encode")
        if enc:
            if name == "start_real": self.p("s_memrealtime s[70:71]"); self.p("s_memrealtime s[72:73]")
            elif enc == self.role + "." + name: self.p("s_memrealtime s[72:73]")
            if name == "end_real":
                p = self.p; n = self.role
                p("s_waitcnt vmcnt(0) lgkmcnt(0)")
                if self.o.get("encwg") is not None:
                    p(f"s_cmp_eq_u32 s2, {self.o['encwg']}"); p("s_cselect_b32 s72, s72, s70")
                p("s_add_u32 s72, s72, 6000")
                p(f"L_enc_{n}:"); p("s_sleep 2"); p("s_memrealtime s[74:75]"); p("s_waitcnt lgkmcnt(0)"); p("s_sub_u32 s76, s72, s74"); p("s_cmp_gt_i32 s76, 0"); p(f"s_cbranch_scc1 L_enc_{n}")
            return
        if not self.o["stamps"]: return
        n = self.nstamp; self.nstamp += 1
        assert STAMP0 + 2 * n + 1 < 102
        self.stamp_names.setdefault(self.role, []).append(name)
        self.p(f"{'s_memrealtime' if real else 's_memtime'} s[{STAMP0+2*n}:{STAMP0+2*n+1}]")
    def dump_stamps(self):
        if not self.o["stamps"]: return
        p = self.p
        p("s_waitcnt vmcnt(0) lgkmcnt(0)")
        p(f"s_lshl_b32 {sT[0]}, s2, 2"); p(f"s_add_u32 {sT[0]}, {sT[0]}, {sWAVE}"); p(f"s_lshl_b32 {sT[0]}, {sT[0]}, 7"); p(f"s_add_u32 {sT[0]}, {sT[0]}, {WS_ST}")
        p("s_mov_b64 exec, 1"); p("v_mov_b32 v1, 0")
        for n in range(self.nstamp):
            p(f"v_mov_b32 v2, s{STAMP0+2*n}")
            p(f"buffer_store_dword v2, v1, {sW}, {sT[0]} offen offset:{4*n}")
    def poll_check(self, vF, load_text, mask=sMASK):
        n = self.npoll; self.npoll += 1
        L = [mk(f"v_cmp_ne_u32 vcc, {sTAG}, {vF}"), mk(f"s_and_b64 vcc, vcc, {mask}"), mk(f"s_cbranch_scc1 L_slow{n}"), mk(f"L_ok{n}:")]
        t = self.tailcode
        t.reset()
        t(f"L_slow{n}:"); t(f"s_mov_b32 {sSPIN}, {self.o['spin']}")
        t(f"L_spin{n}:"); t(load_text); t("s_waitcnt vmcnt(0)")
        t(f"v_cmp_ne_u32 vcc, {sTAG}, {vF}"); t(f"s_and_b64 vcc, vcc, {mask}"); t(f"s_cbranch_scc0 L_ok{n}")
        t(f"s_sub_u32 {sSPIN}, {sSPIN}, 1"); t(f"s_cmp_lg_u32 {sSPIN}, 0"); t(f"s_cbranch_scc1 L_spin{n}")
        t(f"s_branch L_ok{n}")
        return L

    def srd(self, s, lo, hi, size, delta=0):
        b = int(s[2:s.index(":")]); p = self.p
        if delta: p(f"s_sub_u32 s{b}, {lo}, {delta}"); p(f"s_subb_u32 s{b+1}, {hi}, 0")
        else:
            if f"s{b}" != lo: p(f"s_mov_b32 s{b}, {lo}"); p(f"s_mov_b32 s{b+1}, {hi}")
        p(f"s_mov_b32 s{b+2}, {size + delta}"); p(f"s_mov_b32 s{b+3}, 0x00020000")

    def entry(self):
        p = self.p; self.role = "glu"
        p("s_cmp_ge_u32 s2, 256"); p("s_cbranch_scc1 L_done")
        self.stamp("start_real", real=True); self.stamp("start")
        p("s_load_dwordx2 s[4:5], s[0:1], 0")
        p("s_load_dwordx4 s[36:39], s[0:1], 8")
        p("s_load_dwordx4 s[40:43], s[0:1], 32")
        p("s_load_dwordx4 s[56:59], s[0:1], 48")
        p("s_load_dwordx2 s[20:21], s[0:1], 72")
        p("v_lshrrev_b32 v1, 6, v0"); p("v_lshlrev_b32 v2, 7, v0"); p(f"v_readfirstlane_b32 {sWAVE}, v1")
        p("v_and_b32 v0, 63, v0")
        p("s_and_b32 s50, s2, 7"); p("s_lshr_b32 s51, s2, 3")
        p("s_waitcnt lgkmcnt(0)")
        p(f"s_load_dword {sEP}, s[20:21], {WS_E}")
        self.srd(sW, "s20", "s21", WS_SIZE)
        p("s_cmp_ge_u32 s51, 28"); p("s_cbranch_scc1 L_f2")

    def tag(self):
        p = self.p
        p(f"s_mul_i32 {sTAG}, {sEP}, 0x9e3779b1"); p(f"s_add_u32 {sTAG}, {sTAG}, 0x7f4a7c15")

    def code_prefetch(self, label, nbytes, vtmp="a255"):
        p = self.p
        p("s_getpc_b64 s[68:69]")
        p(f"v_min_u32 v2, {nbytes}, v2")
        p(f"global_load_dword {vtmp}, v2, s[68:69]")

    def pi_of(self, dst, src, t1, t2):
        p = self.p
        p(f"v_lshrrev_b32 {t1}, 1, {src}"); p(f"v_sub_u32 {t2}, 64, {t1}")
        p(f"v_cmp_eq_u32 vcc, 1, {src}"); p(f"v_cndmask_b32 {t2}, {t2}, 32, vcc")
        p(f"v_and_b32 {dst}, 1, {src}"); p(f"v_cmp_eq_u32 vcc, 1, {dst}"); p(f"v_cndmask_b32 {dst}, {t1}, {t2}, vcc")

    def glu(self):
        p = self.p; o = self.o; self.role = "glu"
        vL16, vL0, vSGN, vTAG, vROW = "v24", "v25", "v26", "v27", "v28"
        FR, ACC, HP, RAW, TF = 32, 48, 112, 144, 200
        HF = 224
        self.code_prefetch("L_glu", o.get("glu_bytes", 28000))
        p("s_and_b32 s52, s50, 1"); p("s_lshl_b32 s52, s52, 2")
        p(f"s_lshr_b32 {sJ}, s51, 3"); p(f"s_add_u32 {sJ}, {sJ}, s52")
        p(f"s_and_b32 {sRB}, s51, 7"); p(f"s_add_u32 s53, {sRB}, s52")
        p("s_cmp_ge_u32 s51, 24"); p(f"s_cselect_b32 {sJ}, 3, {sJ}"); p(f"s_cselect_b32 {sRB}, s53, {sRB}")
        p("s_lshr_b32 s52, s50, 1"); p("s_lshl_b32 s52, s52, 3"); p(f"s_add_u32 {sRB}, {sRB}, s52")
        self.srd(sX, "s4", "s5", 1835008)
        p(f"s_and_b32 s52, {sJ}, 1"); p("s_lshl_b32 s52, s52, 3"); p(f"s_lshl_b32 s53, {sWAVE}, 4"); p("s_add_u32 s52, s52, s53")
        p("v_lshrrev_b32 v1, 3, v0"); p("v_add_u32 v8, s52, v1"); p("v_xor_b32 v9, 8, v8")
        p("v_and_b32 v7, 7, v0")
        p(f"s_mul_i32 s53, {sRB}, 896")
        for g in range(2):
            self.pi_of("v4", f"v{8+g}", "v5", "v6")
            p("v_mul_u32_u24 v4, 28672, v4"); p(f"v_lshl_add_u32 v4, v7, 4, v4")
            for l in range(7):
                r = RAW + 28 * g + 4 * l
                p(f"buffer_load_dwordx4 v[{r}:{r+3}], v4, {sX}, s53 offen offset:{128*l}")
        self.srd(sG, "s40", "s41", 1605632); self.srd(sU, "s42", "s43", 1605632, delta=2048)
        self.srd(sD, "s56", "s57", 1605632); self.srd(sO, "s58", "s59", 1835008)
        p(f"s_and_b32 {sMI}, {sWAVE}, 1"); p(f"s_lshr_b32 {sNI}, {sWAVE}, 1"); p(f"s_lshl_b32 {sM0}, {sWAVE}, 12")
        p(f"v_lshlrev_b32 {vL16}, 4, v0")
        p(f"v_cmp_eq_u32 vcc, 0, v0"); p(f"v_mov_b32 {vL0}, {OOB}"); p(f"v_cndmask_b32 {vL0}, {vL0}, 0, vcc")
        p("v_lshrrev_b32 v1, 1, v7")
        p("v_lshlrev_b32 v2, 1, v1")
        p("v_and_b32 v4, 1, v1"); p("v_lshlrev_b32 v4, 9, v4")
        p("v_lshrrev_b32 v5, 2, v7"); p("v_lshl_add_u32 v4, v5, 11, v4")
        p("v_and_b32 v5, 1, v7"); p("v_lshl_add_u32 v4, v5, 3, v4")
        p(f"v_add_u32 v4, {XN0}, v4")
        for g in range(2):
            p(f"v_lshrrev_b32 v5, 5, v{8+g}"); p("v_mul_u32_u24 v5, 28672, v5"); p("v_add_u32 v5, v5, v4")
            p(f"v_and_b32 v6, 31, v{8+g}"); p("v_xor_b32 v6, v6, v2"); p(f"v_lshl_add_u32 v{8+g}, v6, 4, v5")
        p("v_lshrrev_b32 v3, 3, v0"); p("v_and_b32 v4, 2, v3"); p("v_lshlrev_b32 v4, 1, v4"); p("v_xor_b32 v5, v7, v4"); p("v_xor_b32 v6, 2, v5")
        p(f"s_lshl_b32 s52, {sNI}, 5"); p(f"s_add_u32 s52, s52, {sMI}"); p("s_mul_i32 s52, s52, 3584"); p(f"s_lshl_b32 s53, {sJ}, 9"); p("s_add_u32 s52, s52, s53")
        p("v_mul_u32_u24 v1, 7168, v3"); p("v_add_u32 v1, s52, v1")
        p("v_lshl_add_u32 v10, v5, 4, v1"); p("v_lshl_add_u32 v12, v6, 4, v1")
        p(f"v_add_u32 v11, {16*3584-1024}, v10"); p(f"v_add_u32 v13, {16*3584-1024}, v12")
        p(f"s_lshl_b32 s52, {sJ}, 3"); p(f"s_add_u32 s52, s52, {sWAVE}"); p("s_mul_i32 s52, s52, 28672")
        p("v_mul_u32_u24 v1, 896, v3"); p("v_add_u32 v1, s52, v1"); p("v_lshl_add_u32 v17, v5, 4, v1")
        for i in range(1, 4): p(f"v_add_u32 v{17+i}, {i*(7168-1024)}, v17")
        p("v_bfe_u32 v3, v0, 4, 1"); p("v_lshrrev_b32 v4, 5, v0"); p("v_bfe_u32 v5, v0, 2, 2"); p("v_and_b32 v6, 3, v0")
        p("v_lshl_add_u32 v1, v3, 1, v4"); p("v_lshlrev_b32 v1, 10, v1"); p("v_lshl_add_u32 v1, v5, 7, v1"); p("v_lshl_add_u32 v1, v6, 3, v1")
        p("v_and_b32 v2, 2, v5"); p("v_add_u32 v7, v2, v3"); p(f"v_xor_b32 v7, {sWAVE}, v7")
        p("v_lshl_add_u32 v14, v7, 5, v1"); p("v_add_u32 v15, 0x10000, v14"); p("v_add_u32 v16, 0x20000, v14")
        p("v_lshl_add_u32 v1, v4, 2, v5"); p("v_lshlrev_b32 v1, 7, v1")
        p("v_lshl_add_u32 v3, v3, 2, v6"); p("v_and_b32 v6, 1, v3"); p("v_lshrrev_b32 v3, 1, v3"); p("v_lshl_add_u32 v3, v6, 2, v3")
        p("v_lshlrev_b32 v3, 3, v3"); p("v_lshlrev_b32 v2, 5, v2"); p("v_xor_b32 v3, v3, v2"); p("v_add_u32 v29, v1, v3")
        p(f"s_lshl_b32 s52, {sNI}, 6"); p("v_xor_b32 v21, s52, v29"); p("v_add_u32 v22, 0x10000, v21"); p("v_add_u32 v23, 0x20000, v21")
        p("v_and_b32 v1, 31, v0"); p("v_bfe_u32 v2, v1, 2, 1"); p("v_lshrrev_b32 v3, 3, v1"); p("v_and_b32 v4, 3, v1")
        p("v_lshl_add_u32 v4, v3, 2, v4"); p("v_lshl_add_u32 v4, v2, 4, v4"); p(f"s_lshl_b32 s52, {sJ}, 5"); p("v_add_u32 v4, s52, v4")
        p(f"v_lshlrev_b32 {vSGN}, 31, v4"); p(f"v_or_b32 {vSGN}, 1.0, {vSGN}")
        p(f"v_cvt_f32_u32 v5, {sNI}"); p("v_mul_f32 v5, 0x3e800000, v5")
        p(f"s_xor_b32 s52, {sNI}, 1"); p("v_or_b32 v2, s52, v4"); p("v_cmp_eq_u32 vcc, 0, v2")
        p("v_mov_b32 v3, 224"); p("v_cndmask_b32 v4, v4, v3, vcc"); p("v_cndmask_b32 v5, v5, 0, vcc")
        p("v_mov_b32 v30, -1"); p("v_cndmask_b32 v30, v30, 0, vcc")
        p("v_cvt_f32_u32 v4, v4"); p(f"v_mul_f32 v4, {f32(1/448)}, v4")
        p("v_lshrrev_b32 v2, 5, v0"); p("v_lshlrev_b32 v2, 4, v2"); p("v_cvt_f32_u32 v2, v2"); p("v_fma_f32 v5, v2, v4, v5")
        for kap in range(14):
            g, par = kap >> 1, kap & 1
            for e2 in range(4):
                d0 = 32 * g + par + 4 * e2
                p(f"v_fmamk_f32 v1, v4, {f32(d0)}, v5"); p(f"v_fmamk_f32 v2, v4, {f32(d0+2)}, v5")
                p("v_cos_f32 v1, v1"); p("v_cos_f32 v2, v2"); p("s_nop 0")
                p(f"v_cvt_pk_bf16_f32 v{TF+4*kap+e2}, v1, v2")
        p(f"s_lshl_b32 s52, {sMI}, 5"); p("v_and_b32 v1, 31, v0"); p("v_add_u32 v1, s52, v1")
        self.pi_of(vROW, "v1", "v2", "v3")
        p(f"v_cvt_f32_u32 v4, {vROW}"); p("v_mul_f32 v4, 0x3c800000, v4")
        p("v_lshrrev_b32 v2, 5, v0"); p("v_lshlrev_b32 v2, 1, v2")
        p(f"v_lshlrev_b32 v7, 31, {vROW}")
        for tl in range(2):
            p(f"s_xor_b32 s52, {sMI}, {tl}"); p("s_lshl_b32 s52, s52, 4"); p("v_add_u32 v3, s52, v2")
            p("v_cmp_eq_u32 vcc, 0, v3"); p("v_cndmask_b32 v6, 0, v7, vcc")
            p("v_cvt_f32_u32 v3, v3"); p("v_fmaak_f32 v5, v3, v4, 0x3e000000")
            for kk in range(2):
                for x in range(4):
                    dp = 8 * kk + 4 * (x >> 1) + (x & 1)
                    p(f"v_fmamk_f32 v1, v4, {f32(dp)}, v5"); p("v_cos_f32 v3, v1"); p("v_sin_f32 v1, v1")
                    if dp == 0: p("v_xor_b32 v3, v3, v6")
                    p("v_cvt_pk_bf16_f32 v1, v1, v3"); p(f"v_accvgpr_write_b32 a{HF+8*tl+4*kk+x}, v1")
        self.tag(); p(f"v_mov_b32 {vTAG}, {sTAG}")
        p(f"s_mov_b32 {sC}, 0xbfb8aa3b")
        self.stamp("setup")
        for g in range(2):
            U = 32 + 56 * g; R = RAW + 28 * g
            for k in range(28):
                p(f"v_lshlrev_b32 v{U+2*k}, 16, v{R+k}"); p(f"v_and_b32 v{U+2*k+1}, 0xffff0000, v{R+k}")
                if k == 0:
                    p(f"v_pk_mul_f32 v[4:5], v[{U}:{U+1}], v[{U}:{U+1}]")
                else:
                    p(f"v_pk_add_f32 v[2:3], v[{U if k == 1 else 2}:{U+1 if k == 1 else 3}], v[{U+2*k}:{U+2*k+1}]")
                    p(f"v_pk_fma_f32 v[4:5], v[{U+2*k}:{U+2*k+1}], v[{U+2*k}:{U+2*k+1}], v[4:5]")
            p("v_add_f32 v2, v2, v3"); p("v_add_f32 v4, v4, v5")
            for dpp in ("quad_perm:[1,0,3,2]", "quad_perm:[2,3,0,1]", "row_half_mirror"):
                p(f"v_add_f32_dpp v2, v2, v2 {dpp} row_mask:0xf bank_mask:0xf"); p(f"v_add_f32_dpp v4, v4, v4 {dpp} row_mask:0xf bank_mask:0xf")
            p(f"v_mul_f32 v2, {f32(1/448)}, v2"); p(f"v_mul_f32 v4, {f32(1/448)}, v4")
            p("v_fma_f32 v4, -v2, v2, v4"); p("v_max_f32 v4, 0, v4")
            p("v_cvt_pk_bf16_f32 v2, v2, v4"); p("v_and_b32 v4, 0xffff0000, v2"); p("v_lshlrev_b32 v2, 16, v2")
            p(f"v_add_f32 v4, {f32(1e-5)}, v4"); p("v_cvt_pk_bf16_f32 v4, v4, v4"); p("v_lshlrev_b32 v4, 16, v4")
            p("v_sqrt_f32 v4, v4"); p("v_cvt_pk_bf16_f32 v4, v4, v4"); p("v_lshlrev_b32 v4, 16, v4")
            p("v_rcp_f32 v4, v4"); p("v_mul_f32 v5, -1.0, v2") ; p("v_mul_f32 v5, v5, v4")
            for l in range(7):
                for k in range(4 * l, 4 * l + 4):
                    p(f"v_pk_fma_f32 v[{U+2*k}:{U+2*k+1}], v[{U+2*k}:{U+2*k+1}], v[4:5], v[4:5] op_sel:[0,0,1] op_sel_hi:[1,0,1]")
                b = U + 8 * l; r = R + 4 * l
                p(f"v_cvt_pk_bf16_f32 v{r}, v{b}, v{b+2}"); p(f"v_cvt_pk_bf16_f32 v{r+1}, v{b+4}, v{b+6}")
                p(f"v_cvt_pk_bf16_f32 v{r+2}, v{b+1}, v{b+3}"); p(f"v_cvt_pk_bf16_f32 v{r+3}, v{b+5}, v{b+7}")
                p(f"ds_write2st64_b64 v{8+g}, v[{r}:{r+1}], v[{r+2}:{r+3}] offset0:{8*l} offset1:{8*l+2}")
        p("v_lshrrev_b32 v5, 5, v0"); p("v_lshlrev_b32 v5, 5, v5"); p(f"v_xor_b32 v5, v5, {vL16}")
        p(f"s_mul_i32 s52, {sMI}, 28672"); p(f"s_add_u32 s53, s52, {XN0}"); p(f"s_sub_u32 s52, {XN0+28672}, s52")
        p("v_add_u32 v1, s53, v5"); p("v_add_u32 v3, s52, v5"); p("v_xor_b32 v2, 64, v1"); p("v_xor_b32 v4, 64, v3")
        p("s_waitcnt lgkmcnt(0)"); p("s_barrier")
        self.stamp("ln")
        NST = 42
        def dma_group(st):
            L = [mk(f"s_add_u32 m0, {sM0}, {(st % 9) * 16384}")]
            if st < 28:
                q, s = divmod(st, 7)
                L.append(mk(f"s_mov_b32 {sSO}, {64*s*3584 + q*128}"))
                L += [mk(f"buffer_load_dwordx4 v{10+i}, {sG if i < 2 else sU}, {sSO} offen offset:{i*1024} lds", tok=("dma", st)) for i in range(4)]
            else:
                s = st - 28
                if s < 10: u, h = s >> 1, s & 1
                else: u, h = 5 + (s & 1), (s - 10) >> 1
                L.append(mk(f"s_add_u32 {sSO}, {sLC[u]}, {h*114688}"))
                L += [mk(f"buffer_load_dwordx4 v{17+i}, {sD}, {sSO} offen offset:{i*1024} lds", tok=("dma", st)) for i in range(4)]
            return L
        dq = deque(); self.issued = 0
        def want(upto):
            while self.issued < min(upto, NST):
                dq.extend(dma_group(self.issued)); self.issued += 1
        def take_dma():
            L = []
            while dq:
                f = dq.popleft(); L.append(f)
                if f.kind == "vmem": break
            return L
        def xread(t, kap):
            return mk(f"ds_read_b128 a[{112*t+4*kap}:{112*t+4*kap+3}], v{1 + 2*t + ((kap >> 1) & 1)} offset:{kap*1024}")
        S = Sched(p, o["cap"])
        want(3)
        for k in range(3): p.extend([xread(0, k)])
        for kap in range(28):
            a = ACC + 16 * (kap // 14); t = TF + 4 * (kap % 14)
            fx = []
            if kap + 3 < 28: fx.append(xread(0, kap + 3))
            fx.append(xread(1, kap))
            fx += take_dma()
            S.mfma(f"v_mfma_f32_32x32x16_bf16 v[{a}:{a+15}], a[{4*kap}:{4*kap+3}], v[{t}:{t+3}], {'0' if kap % 14 == 0 else f'v[{a}:{a+15}]'}", fx)
        self.gemm2_scalars()
        for r in range(16): p(f"v_fma_f32 v{ACC+r}, v{ACC+16+r}, {vSGN}, v{ACC+r}")
        for r in range(8): p(f"v_cvt_pk_bf16_f32 v{FR+r}, v{ACC+2*r}, v{ACC+2*r+1}")
        p(f"s_lshl_b32 s36, {sWAVE}, 11"); p(f"s_add_u32 s36, s36, {F1X}"); p(f"v_add_u32 v5, s36, {vL16}"); p("v_xor_b32 v6, 2048, v5")
        p(f"ds_write_b128 v5, v[{FR}:{FR+3}]"); p(f"ds_write_b128 v5, v[{FR+4}:{FR+7}] offset:1024")
        p("s_waitcnt lgkmcnt(0)"); p("s_barrier")
        p(f"ds_read_b128 v[{FR+8}:{FR+11}], v6"); p(f"ds_read_b128 v[{FR+12}:{FR+15}], v6 offset:1024")
        want(5)
        for k in range(4):
            S.mfma(f"v_mfma_f32_32x32x16_bf16 v[{ACC}:{ACC+15}], a[{HF+4*k}:{HF+4*k+3}], v[{FR+4*k}:{FR+4*k+3}], {'0' if k == 0 else f'v[{ACC}:{ACC+15}]'}", take_dma() + take_dma())
        p("v_lshrrev_b32 v5, 5, v0"); p("v_mul_u32_u24 v5, 114688, v5"); p("v_and_b32 v6, 31, v0"); p("v_lshl_add_u32 v5, v6, 2, v5")
        p(f"s_mul_i32 s36, {sMI}, {16*57344}"); p(f"s_lshl_b32 s37, {sJ}, 1"); p(f"s_add_u32 s37, s37, {sNI}"); p("s_lshl_b32 s37, s37, 12")
        p("s_add_u32 s36, s36, s37"); p(f"s_lshl_b32 s37, {sRB}, 7"); p("s_add_u32 s36, s36, s37"); p(f"s_add_u32 s36, s36, {WS_Q}")
        for x in range(8):
            p(f"v_cvt_pk_bf16_f32 v{FR+x}, v{ACC+2*x}, v{ACC+2*x+1}")
            p(f"s_add_u32 {sSO2}, s36, {(4*(x >> 1) + (x & 1))*57344}")
            p(f"buffer_store_dword v{FR+x}, v5, {sW}, {sSO2} offen sc1", tok="qst")
        p(f"s_lshl_b32 s37, {sJ}, 1"); p(f"s_add_u32 s37, s37, {sMI}"); p("s_lshl_b32 s37, s37, 5"); p(f"s_add_u32 s37, s37, {sRB}")
        p("s_lshl_b32 s37, s37, 1"); p(f"s_add_u32 s37, s37, {sNI}"); p("s_lshl_b32 s37, s37, 2"); p(f"s_add_u32 s37, s37, {WS_QF}")
        self.stamp("f1")
        PF = o["PF"]; NB = PF + 1
        def reads1(n):
            st, k = divmod(n, 4); a = (st % 9) * 16384 + k * 4096; b = FR + 4 * (n % NB)
            return [mk(f"ds_read_b64_tr_b16 v[{b+2*i}:{b+2*i+1}], v{14 + (a >> 16)} offset:{(a & 0xffff) + i*512}") for i in range(2)]
        def epilogue(q):
            L = []
            for t in range(2):
                a = ACC + 32 * (q & 1) + 16 * t
                for half in range(2):
                    E = range(4 * half, 4 * half + 4)
                    L += [f"v_mul_f32 v{a+e}, {sC}, v{a+e}" for e in E]
                    L += [f"v_exp_f32 v{a+e}, v{a+e}" for e in E]
                    L += [f"v_add_f32 v{a+e}, 1.0, v{a+e}" for e in E]
                    L += [f"v_rcp_f32 v{a+e}, v{a+e}" for e in E]
                    L += [f"v_mul_f32 v{a+e}, v{a+e}, v{a+8+e}" for e in E]
                    L += [f"v_cvt_pk_bf16_f32 v{HP+8*q+4*t+2*half+e//2}, v{a+4*half+e}, v{a+4*half+e+1}" for e in (0, 2)]
            return L
        LEAD = o.get("lead", 5)
        p.wait_tok(("dma", 0)); p("s_barrier")
        p(".p2alignl 5, 0xbf800000")
        for n in range(PF): p.extend(reads1(n))
        want(LEAD + 1)
        for n in range(112):
            q, kap = divmod(n, 28)
            fixed = [[], []]; nn = n + PF
            if nn % 4 == 0:
                st = nn // 4
                fixed[0] += [mkwait(("dma", st)), mk("s_barrier")]
                if st <= 26: want(st + LEAD + 1)
                if st == 4: S.add([mkwait("qst"), f"buffer_store_dword {vTAG}, {vL0}, {sW}, s37 offen sc1"])
            if nn < 112:
                r = reads1(nn); fixed[0].append(r[0]); fixed[1].append(r[1])
            fixed[1] += take_dma()
            if kap == 1 and q > 0: S.add(epilogue(q - 1))
            if kap == 27: S.drain()
            b = FR + 4 * (n % NB)
            for t in range(2):
                a = ACC + 32 * (q & 1) + 16 * t
                S.mfma(f"v_mfma_f32_32x32x16_bf16 v[{a}:{a+15}], v[{b}:{b+3}], a[{112*t+4*kap}:{112*t+4*kap+3}], {'0' if kap == 0 else f'v[{a}:{a+15}]'}", fixed[t], used=t)
        assert not dq
        self.stamp("g1")
        p(f"s_lshl_b32 s36, {sMI}, 14"); p(f"s_add_u32 s36, s36, {HX}"); p(f"v_add_u32 v2, s36, {vL16}")
        p(f"s_lshl_b32 s36, {sWAVE}, 10"); p("v_add_u32 v3, s36, v2"); p("v_xor_b32 v4, 0x4000, v3")
        ep = epilogue(3)
        wr = lambda q, t: f"ds_write_b128 v{3+t}, v[{HP+8*q+4*t}:{HP+8*q+4*t+3}] offset:{q*4096}"
        p.extend(ep[:44]); p(wr(3, 0))
        others = [wr(q, t) for q in range(3) for t in range(2)]
        for i, x in enumerate(ep[44:]):
            p(x)
            if i % 7 == 3 and others: p(others.pop())
        assert not others
        p(wr(3, 1))
        p("s_waitcnt lgkmcnt(0)"); p("s_barrier")
        self.stamp("hx")
        PF2 = 3; NB2 = 4
        def reads2(n):
            u, k = divmod(n, 16); b = FR + 4 * (n % NB2)
            if u < 5:
                st = 28 + 2 * u + (k >> 3); a = (st % 9) * 16384 + (k & 7) * 2048; v = 21 + (a >> 16)
            else:
                a = (k >> 3) * 32768 + (k & 7) * 2048; v = 5 + (u - 5)
            return [mk(f"ds_read_b64_tr_b16 v[{b+2*i}:{b+2*i+1}], v{v} offset:{(a & 0xffff) + i*1024}") for i in range(2)]
        href = lambda k: mk(f"ds_read_b128 a[{4*k}:{4*k+3}], v2 offset:{k*1024}")
        want(28 + LEAD + 1)
        for n in range(PF2): p.extend([href(n)] + reads2(n))
        SEL = RAW; XT = RAW + 8; vZF = "v7"; PK = RAW + 16
        fl = []
        fl += [f"s_and_b32 s36, {sJ}, 1", f"s_xor_b32 s36, s36, {sNI}", "s_lshl_b32 s36, s36, 6", f"s_lshl_b32 s38, {sNI}, 14", "s_add_u32 s38, s38, 32768",
               "v_xor_b32 v6, s36, v29", "v_add_u32 v6, s38, v6", "v_xor_b32 v5, 64, v6"]
        fl += ["v_lshrrev_b32 v8, 5, v0", "v_and_b32 v9, 31, v0", "v_lshlrev_b32 v8, 2, v8", "v_sub_u32 v8, v9, v8", "v_and_b32 v9, 1, v8", "v_lshlrev_b32 v9, 4, v9",
               "v_mov_b32 v1, 0x3f80", "v_lshlrev_b32 v9, v9, v1", "v_and_b32 v8, -2, v8"]
        for kk in range(2):
            for x in range(4):
                fl += [f"v_cmp_eq_u32 vcc, {16*kk + 8*(x >> 1) + 2*(x & 1)}, v8", "s_nop 1", f"v_cndmask_b32 v{SEL+4*kk+x}, 0, v9, vcc"]
        fl += [f"v_and_b32 v{TF+r}, v{TF+r}, v30" for r in range(56)]
        fl += [f"v_lshrrev_b32 v8, 16, {vSGN}", f"v_and_b32 v9, 0xffff0000, v{TF}", "v_or_b32 v8, v8, v9", f"s_xor_b32 s36, {sNI}, 1", "v_lshrrev_b32 v9, 5, v0",
               "v_or_b32 v9, s36, v9", "v_cmp_eq_u32 vcc, 0, v9", "s_nop 1", f"v_cndmask_b32 v{TF}, v{TF}, v8, vcc"]
        fl += [f"v_mul_u32_u24 v31, 28672, {vROW}", "v_lshrrev_b32 v8, 5, v0", "v_lshl_add_u32 v31, v8, 5, v31", f"s_mul_i32 s36, {sRB}, 896", f"s_lshl_b32 s38, {sJ}, 6",
               "s_add_u32 s36, s36, s38", f"s_mul_i32 s38, {sNI}, 448", "s_add_u32 s36, s36, s38", "v_add_u32 v31, s36, v31",
               f"buffer_load_dwordx4 v[{XT}:{XT+3}], v31, {sX}, 0 offen", f"buffer_load_dwordx4 v[{XT+4}:{XT+7}], v31, {sX}, 0 offen offset:16"]
        fl += [f"s_lshl_b32 s39, {sMI}, 8", f"s_add_u32 s39, s39, {WS_ZF}", "v_lshlrev_b32 v12, 2, v0",
               f"s_lshl_b32 s40, {sRB}, 1", f"s_add_u32 s40, s40, {sMI}", "s_lshl_b32 s40, s40, 1", f"s_add_u32 s40, s40, {sNI}", "s_mul_i32 s40, s40, 14336", f"s_add_u32 s40, s40, {WS_Z}",
               f"s_lshl_b32 s41, {sWAVE}, 2", "s_lshr_b32 s41, 0x0876, s41", "s_and_b32 s41, s41, 15", "s_lshl_b32 s41, s41, 14",
               "v_bfe_u32 v8, v0, 1, 4", "v_lshrrev_b32 v9, 5, v0", "v_lshlrev_b32 v9, 1, v9", "v_bfe_u32 v10, v0, 2, 2", "v_xor_b32 v9, v9, v10",
               "v_and_b32 v10, 1, v0", "v_lshl_add_u32 v9, v9, 1, v10", "v_lshlrev_b32 v9, 4, v9", "v_lshl_add_u32 v9, v8, 7, v9", "v_add_u32 v10, s41, v9", "v_xor_b32 v11, 32, v10"]
        low = deque(mk(x) for x in fl)
        zload = f"buffer_load_dword {vZF}, v12, {sW}, s39 offen sc1"
        def zdma():
            L = []
            for g in range(4):
                L += [mk(f"s_add_u32 m0, s41, {g*4096}"), mk(f"s_add_u32 {sSO}, s40, {g*4096}")]
                L += [mk(f"buffer_load_dwordx4 {vL16}, {sW}, {sSO} offen offset:{i*1024} sc1 lds", tok="zd") for i in range(4 if g < 3 else 2)]
            return L
        for n in range(112):
            u, k = divmod(n, 16)
            fx = []; nn = n + PF2
            if nn % 8 == 0 and nn < 96:
                uu, kk = divmod(nn, 16)
                if uu < 5: toks = [28 + nn // 8]
                else: toks = [38 + 2 * (kk >> 3), 39 + 2 * (kk >> 3)]
                fx += [mkwait(*[("dma", s) for s in toks]), mk("s_barrier")]
                st = 28 + nn // 8
                want(min(st + LEAD + 1, 35) if st < 31 else st + LEAD + 1)
            if nn < 112: fx += reads2(nn)
            if nn < 16: fx.append(href(nn))
            if n % 2 == 1 or u >= 5: fx += take_dma()
            if k == 2 and u > 0:
                a = ACC + 16 * ((u - 1) & 1)
                L = [f"v_cvt_pk_bf16_f32 v{PK+r}, v{a+2*r}, v{a+2*r+1}" for r in range(8)]
                L.insert(4, mk(f"buffer_store_dwordx4 v[{PK}:{PK+3}], {vL16}, {sW}, {sPD[u-1]} offen sc1", tok=("ps", u - 1)))
                L.append(mk(f"buffer_store_dwordx4 v[{PK+4}:{PK+7}], {vL16}, {sW}, {sPD[u-1]} offen offset:1024 sc1", tok=("ps", u - 1)))
                S.add(L)
            if k == 12 and u >= 3:
                S.add([mkwait(("ps", u - 3)), f"buffer_store_dword {vTAG}, {vL0}, {sW}, {sPF[u-3]} offen sc1"])
            if n == 64:
                while low: S.add([low.popleft()])
                S.add([zload, f"s_mov_b64 {sMASK}, -1"])
            if n == 80:
                S.drain(); assert not dq
                p.extend(self.poll_check(vZF, zload))
                dq.extend(zdma())
            a = ACC + 16 * (u & 1); b = FR + 4 * (n % NB2)
            if not S.q and low:
                S.add([low.popleft() for _ in range(min(3, len(low)))])
            S.mfma(f"v_mfma_f32_32x32x16_bf16 v[{a}:{a+15}], v[{b}:{b+3}], a[{4*k}:{4*k+3}], {'0' if k == 0 else f'v[{a}:{a+15}]'}", fx, used=1)
        S.drain(); assert not dq
        self.stamp("g2")
        Y = ACC
        p.wait_tok(("ps", 4)); p(f"buffer_store_dword {vTAG}, {vL0}, {sW}, {sPF[4]} offen sc1")
        p.wait_tok("zd")
        ZF = 64; EO = ACC + 32
        for kap in range(14): p(f"ds_read_b128 a[{ZF+4*kap}:{ZF+4*kap+3}], v{10 + (kap & 1)} offset:{(kap >> 1)*2048}")
        p.wait_tok(("ps", 5)); p(f"buffer_store_dword {vTAG}, {vL0}, {sW}, {sPF[5]} offen sc1")
        pre = [f"s_mul_i32 s36, {sRB}, 7", f"s_add_u32 s36, s36, {sJ}", "s_lshl_b32 s36, s36, 2", f"s_add_u32 s36, s36, {sWAVE}",
               "s_lshl_b32 s39, s36, 5", f"s_add_u32 s39, s39, {WS_PF}", "s_mul_i32 s40, s36, 14336", f"s_add_u32 s40, s40, {WS_P}",
               f"s_lshl_b32 s44, 1, {sJ}", "s_xor_b32 s44, s44, 0x7f", "s_mov_b32 s45, 0", "v_min_u32 v12, 28, v12",
               f"s_lshl_b32 s36, {sWAVE}, 12", f"s_add_u32 s36, s36, {MISC}", f"v_add_u32 v8, s36, {vL16}",
               f"s_lshl_b32 s36, {sMI}, 12", f"s_lshl_b32 s38, {sNI}, 11", "s_add_u32 s36, s36, s38", f"s_add_u32 s36, s36, {MISC}", f"v_add_u32 v9, s36, {vL16}", "v_xor_b32 v13, 0x1000, v9"]
        S.add(pre)
        pload = f"buffer_load_dword {vZF}, v12, {sW}, s39 offen sc1"
        for kap in range(14):
            a = EO + 16 * (kap & 1); t = TF + 4 * kap
            S.mfma(f"v_mfma_f32_32x32x16_bf16 v[{a}:{a+15}], a[{ZF+4*kap}:{ZF+4*kap+3}], v[{t}:{t+3}], {'0' if kap < 2 else f'v[{a}:{a+15}]'}")
        S.drain()
        PM = HP
        for r in range(8):
            e0, o0 = EO + 2 * r, EO + 16 + 2 * r
            p(f"v_pk_add_f32 v[2:3], v[{e0}:{e0+1}], v[{o0}:{o0+1}]")
            p(f"v_pk_add_f32 v[4:5], v[{e0}:{e0+1}], v[{o0}:{o0+1}] neg_lo:[0,1] neg_hi:[0,1]")
            p(f"v_cvt_pk_bf16_f32 v{PM+r}, v2, v3"); p(f"v_cvt_pk_bf16_f32 v{PM+8+r}, v4, v5")
            if r % 4 == 3:
                p(f"ds_write_b128 v8, v[{PM+r-3}:{PM+r}] offset:{(r >> 2)*1024}"); p(f"ds_write_b128 v8, v[{PM+8+r-3}:{PM+8+r}] offset:{2048+(r >> 2)*1024}")
        p(pload)
        p("s_waitcnt lgkmcnt(0)"); p("s_barrier")
        p(f"s_or_b32 s36, s2, {sWAVE}"); p("s_cmp_eq_u32 s36, 0"); p(f"s_cselect_b32 s36, {WS_E}, {OOB}"); p(f"s_add_u32 s38, {sEP}, 1"); p("v_mov_b32 v1, s38")
        G = 128
        for i in range(8):
            tl, part, kk = i >> 2, (i >> 1) & 1, i & 1
            p(f"ds_read_b128 a[{G+4*i}:{G+4*i+3}], {'v9' if tl == 0 else 'v13'} offset:{part*8192 + kk*1024}")
        p(f"buffer_store_dword v1, {vL0}, {sW}, s36 offen sc1")
        SA = ACC + 16
        for i in range(8):
            tl, part, kk = i >> 2, (i >> 1) & 1, i & 1
            p(f"v_mfma_f32_32x32x16_bf16 v[{SA}:{SA+15}], a[{G+4*i}:{G+4*i+3}], a[{HF+8*tl+4*kk}:{HF+8*tl+4*kk+3}], {'0' if i == 0 else f'v[{SA}:{SA+15}]'}")
        self.stamp("f3")
        p.extend(self.poll_check(vZF, pload))
        self.stamp("pflag")
        PA = 160
        for i in range(6):
            p(f"s_add_u32 s36, {sJ}, {1+i}"); p("s_cmp_ge_u32 s36, 7"); p("s_cselect_b32 s38, 7, 0"); p("s_sub_u32 s36, s36, s38")
            p("s_lshl_b32 s36, s36, 11"); p("s_add_u32 s36, s36, s40")
            for h in range(2):
                p(f"buffer_load_dwordx4 a[{PA+8*i+4*h}:{PA+8*i+4*h+3}], {vL16}, {sW}, s36 offen offset:{h*1024} sc1")
        for i in range(12):
            h = i & 1
            p(f"v_mfma_f32_32x32x16_bf16 v[{Y}:{Y+15}], v[{SEL+4*h}:{SEL+4*h+3}], a[{PA+4*i}:{PA+4*i+3}], v[{Y}:{Y+15}]")
        self.stamp("psum")
        Tm = EO
        for half in range(2):
            E = range(8 * half, 8 * half + 8)
            for e in E: p(f"v_mul_f32 v{Tm+e}, {sC}, v{Y+e}")
            for e in E: p(f"v_exp_f32 v{Tm+e}, v{Tm+e}")
            for e in E: p(f"v_mul_f32 v{Y+e}, v{Y+e}, v{SA+e}")
            for e in E: p(f"v_add_f32 v{Tm+e}, 1.0, v{Tm+e}")
            for e in E: p(f"v_rcp_f32 v{Tm+e}, v{Tm+e}")
            for e in E: p(f"v_lshlrev_b32 v{SA+e}, 16, v{XT+e//2}" if e % 2 == 0 else f"v_and_b32 v{SA+e}, 0xffff0000, v{XT+e//2}")
            for e in E: p(f"v_fma_f32 v{Y+e}, v{Y+e}, v{Tm+e}, v{SA+e}")
            for e in range(4): p(f"v_cvt_pk_bf16_f32 v{PK+4*half+e}, v{Y+8*half+2*e}, v{Y+8*half+2*e+1}")
            p(f"buffer_store_dwordx4 v[{PK+4*half}:{PK+4*half+3}], v31, {sO}, 0 offen offset:{16*half}")
        self.stamp("end"); self.stamp("end_real", real=True)
        self.dump_stamps()
        p("s_endpgm")

    def gemm2_scalars(self):
        p = self.p
        packs = []
        for j in range(7):
            LA, LB = j >> 1, (j + 7) >> 1
            order = [c % 7 for c in range(LB + 1, LB + 8) if c % 7 not in (LA, LB)] + [LA, LB]
            packs.append(sum(c << (4 * i) for i, c in enumerate(order)))
        p(f"s_mov_b32 s36, {packs[0]}")
        for j in range(1, 7):
            p(f"s_cmp_eq_u32 {sJ}, {j}"); p(f"s_cselect_b32 s36, {packs[j]}, s36")
        p(f"s_mul_i32 s37, {sRB}, 28"); p(f"s_add_u32 s37, s37, {sMI}")
        p(f"s_lshl_b32 s40, {sJ}, 11"); p(f"s_add_u32 s40, s40, {WS_P}"); p(f"s_lshl_b32 s41, {sJ}, 2"); p(f"s_add_u32 s41, s41, {WS_PF}")
        for u in range(7):
            p(f"s_bfe_u32 s38, s36, {(4*u) | (4 << 16)}"); p(f"s_lshl_b32 {sLC[u]}, s38, 7")
            if u < 5:
                p("s_lshl_b32 s38, s38, 1"); p(f"s_add_u32 s38, s38, {sNI}")
            elif u == 5:
                p(f"s_mul_i32 s38, {sNI}, 7"); p(f"s_add_u32 s38, s38, {sJ}"); p("s_xor_b32 s38, s38, 1")
            else: continue
            p("s_cmp_ge_u32 s38, 7"); p("s_cselect_b32 s39, 26, 0"); p("s_lshl_b32 s38, s38, 2"); p("s_sub_u32 s38, s38, s39"); p("s_add_u32 s38, s38, s37")
            p(f"s_mul_i32 {sPD[u]}, s38, 14336"); p(f"s_add_u32 {sPD[u]}, {sPD[u]}, s40")
            p(f"s_lshl_b32 {sPF[u]}, s38, 5"); p(f"s_add_u32 {sPF[u]}, {sPF[u]}, s41")

    def f2(self):
        p = self.p; o = self.o; self.role = "f2"
        p.reset(); self.nstamp = 2 if o["stamps"] else 0
        if o["stamps"]: self.stamp_names["f2"] = ["start_real", "start"]
        p(".p2alignl 6, 0xbf800000")
        p("L_f2:")
        p("s_waitcnt lgkmcnt(0)")
        self.code_prefetch("L_f2", o.get("f2_bytes", 16000))
        sP, sSTEP, sTA, sTB = sRB, sJ, sMI, sNI
        sWR, sWI = sG, sU
        vL16, vL0, vTAG = "v24", "v25", "v27"
        p(f"s_lshl_b32 {sP}, s50, 2"); p(f"s_add_u32 {sP}, {sP}, s51"); p(f"s_sub_u32 {sP}, {sP}, 28")
        self.srd(sWR, "s36", "s37", 921600); self.srd(sWI, "s38", "s39", 921600)
        p(f"s_cmp_eq_u32 {sP}, 0"); p(f"s_cselect_b32 {sSTEP}, 32, 64"); p("s_cselect_b64 s[46:47], -1, 0")
        self.tag(); p(f"v_mov_b32 {vTAG}, {sTAG}")
        p(f"v_lshlrev_b32 {vL16}, 4, v0")
        p(f"v_cmp_eq_u32 vcc, 0, v0"); p(f"v_mov_b32 {vL0}, {OOB}"); p(f"v_cndmask_b32 {vL0}, {vL0}, 0, vcc")
        p("v_lshrrev_b32 v1, 5, v0"); p("v_and_b32 v2, 31, v0")
        for i in range(8):
            p(f"s_lshl_b32 s52, {sWAVE}, 3"); p(f"s_add_u32 s52, s52, {i}"); p(f"s_mul_i32 s53, s52, {sSTEP}"); p(f"s_add_u32 s53, s53, {sP}")
            p("s_sub_u32 s54, 2048, s53"); p("s_cmp_eq_u32 s53, 0"); p("s_cselect_b32 s54, 1024, s54")
            p("s_mul_i32 s53, s53, 450"); p("s_mul_i32 s54, s54, 450"); p("s_and_b32 s53, s53, -16"); p("s_and_b32 s54, s54, -16")
            p("v_mov_b32 v4, s53"); p("v_mov_b32 v5, s54"); p("v_cmp_eq_u32 vcc, 0, v1"); p("v_cndmask_b32 v4, v5, v4, vcc"); p("v_lshl_add_u32 v4, v2, 4, v4")
            p("s_lshl_b32 m0, s52, 10"); p(f"buffer_load_dwordx4 v4, {sWR}, 0 offen lds")
            p("s_add_u32 m0, m0, 32768"); p(f"buffer_load_dwordx4 v4, {sWI}, 0 offen lds")
        MF, MI, IN = 0, 32, 64
        p("v_and_b32 v3, 1, v0"); p("v_bfe_u32 v4, v0, 1, 4")
        for mu in range(2):
            p(f"v_add_u32 v5, {16*mu}, v4"); p(f"v_mul_lo_u32 v6, v5, {sSTEP}"); p(f"v_add_u32 v6, {sP}, v6")
            p("v_cvt_f32_u32 v7, v3"); p("v_mul_f32 v7, 0x3e800000, v7")
            p("v_xor_b32 v8, 1, v3"); p("v_or_b32 v8, v8, v6"); p("v_cmp_eq_u32 vcc, 0, v8")
            p("v_mov_b32 v9, 1024"); p("v_cndmask_b32 v6, v6, v9, vcc"); p("v_cndmask_b32 v7, v7, 0, vcc")
            p("v_cvt_f32_u32 v6, v6"); p("v_mul_f32 v6, 0x3a000000, v6")
            p("v_lshlrev_b32 v8, 2, v1"); p("v_cvt_f32_u32 v8, v8"); p("v_fma_f32 v7, v8, v6, v7")
            p("v_and_b32 v8, 1, v5"); p("v_cvt_f32_u32 v8, v8"); p("v_cndmask_b32 v12, 0, v8, s[46:47]"); p("v_sub_f32 v10, 1.0, v12")
            p("v_cndmask_b32 v11, 1.0, 0, s[46:47]")
            for kap in range(4):
                for x in range(4):
                    p(f"v_fmamk_f32 v8, v6, {f32(8*kap+x)}, v7"); p("v_cos_f32 v9, v8"); p("v_sin_f32 v8, v8"); p("v_mul_f32 v13, v9, v12")
                    p("v_fma_f32 v8, v8, v11, v13"); p("v_mul_f32 v9, v9, v10"); p("v_cvt_pk_bf16_f32 v8, v9, v8"); p(f"v_accvgpr_write_b32 a{MF+16*mu+4*kap+x}, v8")
        for nu in range(2):
            p(f"v_add_u32 v5, {16*nu}, v4"); p("v_cvt_f32_u32 v6, v5"); p("v_mul_f32 v6, 0x3a000000, v6")
            p("v_cvt_f32_u32 v7, v3"); p("v_mul_f32 v7, 0xbe800000, v7"); p("v_cndmask_b32 v7, v7, 0, s[46:47]")
            p(f"v_lshlrev_b32 v8, 1, v1"); p(f"v_mul_lo_u32 v8, v8, {sSTEP}"); p(f"v_add_u32 v14, {sP}, v8"); p("v_cvt_f32_u32 v8, v14"); p("v_fma_f32 v7, v8, v6, v7")
            p(f"v_cvt_f32_u32 v8, {sSTEP}"); p("v_mul_f32 v6, v6, v8")
            p("v_cvt_f32_u32 v8, v3"); p("v_cndmask_b32 v11, 1.0, v8, s[46:47]"); p("v_sub_f32 v8, 1.0, v8"); p("v_cndmask_b32 v10, 1.0, v8, s[46:47]")
            p("v_lshlrev_b32 v12, 31, v5"); p("v_xor_b32 v12, -1.0, v12")
            for x in range(16):
                sig = 16 * (x >> 3) + 4 * ((x >> 1) & 3) + (x & 1)
                p(f"v_fmamk_f32 v8, v6, {f32(sig)}, v7"); p("v_cos_f32 v9, v8"); p("v_sin_f32 v8, v8")
                if x == 0: p("v_cmp_eq_u32 vcc, 0, v14"); p("v_cndmask_b32 v8, v8, v12, vcc")
                p(f"v_mul_f32 v9, v9, v{10+(x & 1)}"); p(f"v_mul_f32 v8, v8, v{10+(x & 1)}")
                p("v_cvt_pk_bf16_f32 v8, v9, -v8"); p(f"v_accvgpr_write_b32 a{MI+16*nu+x}, v8")
        CA, CD, AA, AB = 32, 96, 128, 192
        PR = 14
        p("v_bfe_u32 v5, v0, 2, 1"); p("v_bfe_u32 v6, v0, 3, 2"); p("v_and_b32 v7, 3, v0"); p("v_lshl_add_u32 v7, v6, 2, v7"); p("v_lshl_add_u32 v7, v5, 4, v7")
        p(f"s_lshl_b32 s52, {sWAVE}, 5"); p("v_add_u32 v7, s52, v7")
        p("v_cmp_eq_u32 s[48:49], 0, v7")
        p(f"s_lshl_b32 s52, {sP}, 1"); p("s_and_b32 s53, s52, 15"); p("s_sub_u32 s54, 0, s52"); p("s_and_b32 s54, s54, 15"); p("s_add_u32 s54, s54, 512")
        p("v_lshlrev_b32 v5, 11, v1"); p("v_lshl_add_u32 v6, v7, 1, v5")
        p("v_add_u32 v8, s53, v6"); p("v_add_u32 v9, s54, v6")
        p("v_mov_b32 v6, 448"); p("v_cndmask_b32 v6, 0, v6, s[48:49]"); p("v_add_u32 v10, v8, v6"); p("v_add_u32 v11, v9, v6")
        p(f"s_mov_b32 s52, {f32(2/2048/448)}"); p(f"s_cmp_eq_u32 {sP}, 0"); p(f"s_cselect_b32 s52, {f32(4/2048/448)}, s52")
        p("v_mov_b32 v12, s52"); p("v_mul_f32 v13, 0.5, v12"); p("v_cndmask_b32 v13, v12, v13, s[48:49]")
        p("v_cndmask_b32 v26, v13, 0, s[48:49]")
        p(f"v_or_b32 v6, {sP}, v1"); p("v_cmp_eq_u32 s[50:51], 0, v6")
        p(f"s_lshl_b32 s52, {sWAVE}, 14"); p("s_add_u32 s52, s52, 65536"); p(f"v_add_u32 v28, s52, {vL16}")
        for r in range(AA, AA + 12): p(f"v_mov_b32 v{r}, 0")
        p("s_waitcnt vmcnt(0)"); p("s_barrier")
        def coef(x, job):
            sig = 16 * (x >> 3) + 4 * ((x >> 1) & 3) + (x & 1); off = sig * 1024 + (256 if job else 0)
            a, b, c, d = AA, AA + 1, AA + 2, AA + 3
            dst = CA + 4 * x if job == 0 else AA + 16
            sa, sb = ("v13", "v26") if job == 0 else ("v12", "v12")
            p(f"ds_read_u16_d16_hi v{a}, v8 offset:{off}"); p(f"ds_read_u16_d16_hi v{b}, v8 offset:{off+32768}")
            p(f"ds_read_u16_d16_hi v{c}, v9 offset:{off}"); p(f"ds_read_u16_d16_hi v{d}, v9 offset:{off+32768}")
            if job == 0:
                p(f"ds_read_u16_d16_hi v{a+4}, v10 offset:{off}"); p(f"ds_read_u16_d16_hi v{b+4}, v10 offset:{off+32768}")
                p(f"ds_read_u16_d16_hi v{c+4}, v11 offset:{off}"); p(f"ds_read_u16_d16_hi v{d+4}, v11 offset:{off+32768}")
            p(f"v_add_f32 v{dst}, v{a}, v{c}"); p(f"v_sub_f32 v{dst+1}, v{b}, v{d}"); p(f"v_add_f32 v{dst+2}, v{b}, v{d}"); p(f"v_sub_f32 v{dst+3}, v{c}, v{a}")
            if job == 0:
                p(f"v_add_f32 v{CD+2*x}, v{a+4}, v{c+4}"); p(f"v_sub_f32 v{CD+2*x+1}, v{b+4}, v{d+4}")
            if x == 0:
                pr = PR + (6 if job else 0)
                p(f"v_cndmask_b32 v{pr}, v{dst}, v{a}, s[50:51]"); p(f"v_cndmask_b32 v{pr+1}, v{dst}, v{c}, s[50:51]")
                p(f"v_cndmask_b32 v{pr+2}, v{dst+2}, v{b}, s[50:51]"); p(f"v_cndmask_b32 v{pr+3}, v{dst+2}, v{d}, s[50:51]")
                p(f"v_cndmask_b32 v{dst+1}, v{dst+1}, 0, s[50:51]"); p(f"v_cndmask_b32 v{dst+3}, v{dst+3}, 0, s[50:51]")
                p(f"v_mul_f32 v{pr}, v{pr}, {sa}"); p(f"v_mul_f32 v{pr+1}, v{pr+1}, {sa}"); p(f"v_mul_f32 v{pr+2}, v{pr+2}, {sb}"); p(f"v_mul_f32 v{pr+3}, v{pr+3}, {sb}")
                if job == 0:
                    p(f"v_cndmask_b32 v{pr+4}, v{CD}, v{a+4}, s[50:51]"); p(f"v_cndmask_b32 v{pr+5}, v{CD}, v{c+4}, s[50:51]")
                    p(f"v_cndmask_b32 v{CD+1}, v{CD+1}, 0, s[50:51]")
                    p(f"v_mul_f32 v{pr+4}, v{pr+4}, {sa}"); p(f"v_mul_f32 v{pr+5}, v{pr+5}, {sa}")
            p(f"v_mul_f32 v{dst}, v{dst}, {sa}"); p(f"v_mul_f32 v{dst+1}, v{dst+1}, {sa}"); p(f"v_mul_f32 v{dst+2}, v{dst+2}, {sb}"); p(f"v_mul_f32 v{dst+3}, v{dst+3}, {sb}")
            if job == 0:
                p(f"v_mul_f32 v{CD+2*x}, v{CD+2*x}, {sa}"); p(f"v_mul_f32 v{CD+2*x+1}, v{CD+2*x+1}, {sa}")
            else:
                p(f"ds_write_b128 v28, v[{dst}:{dst+3}] offset:{x*1024}")
        for x in range(16): coef(x, 0)
        for x in range(16): coef(x, 1)
        p("v_lshlrev_b32 v8, 9, v1"); p("v_lshl_add_u32 v8, v2, 2, v8")
        p("v_lshlrev_b32 v9, 2, v0")
        p(f"s_mul_i32 s52, {sP}, 57344"); p(f"s_lshl_b32 s53, {sWAVE}, 13"); p("s_add_u32 s52, s52, s53"); p(f"s_add_u32 s52, s52, {WS_Q}")
        p("s_add_u32 s53, s52, 32768"); p(f"s_cmp_eq_u32 {sWAVE}, 3"); p(f"s_cselect_b32 s53, {OOB}, s53"); p("s_cselect_b64 s[48:49], 0, -1")
        p(f"s_lshr_b32 s56, {sP}, 4"); p(f"s_lshl_b32 s54, {sWAVE}, 1"); p("s_add_u32 s54, s54, s56"); p("s_lshl_b32 s54, s54, 8"); p(f"s_add_u32 s54, s54, {WS_QF}")
        p("s_add_u32 s55, s54, 2048")
        p("s_mul_i32 s56, s56, 28672"); p(f"s_and_b32 s57, {sP}, 15"); p("s_lshl_b32 s57, s57, 7"); p("s_add_u32 s56, s56, s57")
        p(f"s_lshl_b32 s57, {sWAVE}, 11"); p("s_add_u32 s56, s56, s57"); p(f"s_add_u32 s56, s56, {WS_Z}")
        p("s_add_u32 s57, s56, 8192"); p(f"s_cmp_eq_u32 {sWAVE}, 3"); p(f"s_cselect_b32 s57, {OOB}, s57")
        p("v_lshrrev_b32 v5, 3, v0"); p("v_and_b32 v6, 7, v0"); p("v_mul_u32_u24 v10, 57344, v5"); p("v_lshl_add_u32 v10, v6, 4, v10")
        p(f"s_lshl_b32 s58, {sWAVE}, 13"); p("s_add_u32 s58, s58, 131072")
        p("v_and_b32 v7, 3, v5"); p("v_lshlrev_b32 v7, 1, v7"); p("v_xor_b32 v7, v7, v6"); p("v_lshlrev_b32 v7, 4, v7"); p("v_lshl_add_u32 v7, v5, 7, v7"); p("v_add_u32 v13, s58, v7")
        p(f"s_bfe_u32 s59, {sP}, {1 | (2 << 16)}")
        p("v_lshlrev_b32 v5, 1, v1"); p("v_xor_b32 v5, s59, v5"); p("v_and_b32 v6, 3, v4"); p("v_xor_b32 v5, v5, v6"); p("v_lshl_add_u32 v5, v5, 1, v3")
        p("v_lshlrev_b32 v5, 4, v5"); p("v_lshl_add_u32 v5, v4, 7, v5"); p("v_add_u32 v11, s58, v5"); p("v_xor_b32 v12, 32, v11")
        p(f"s_lshl_b32 s59, {sP}, 2"); p(f"s_add_u32 s59, s59, {sWAVE}"); p("s_lshl_b32 s59, s59, 2"); p(f"s_add_u32 s59, s59, {WS_ZF}")
        p(f"s_mov_b64 {sMASK}, -1")
        self.stamp("setup")
        def qloads(job):
            for part in range(2):
                p(f"s_add_u32 {sSO}, s{52+job}, {part*4096}")
                for kap in range(4):
                    for i in range(4):
                        p(f"buffer_load_dword a{IN+32*job+16*part+4*kap+i}, v8, {sW}, {sSO} offen offset:{(8*kap+i)*128} sc1")
        for job in range(2):
            ld = f"buffer_load_dword v{5+job}, v9, {sW}, s{54+job} offen sc1"
            p(ld); p.extend(self.poll_check(f"v{5+job}", ld, sMASK if job == 0 else "s[48:49]"))
            if job == 0: self.stamp("qflag")
            qloads(job)
        S = Sched(p, o["cap"])
        def fwd(job):
            A = AA if job == 0 else AB
            for part in range(2):
                for mu in range(2):
                    a = A + 32 * part + 16 * mu
                    for kap in range(4):
                        b = IN + 32 * job + 16 * part + 4 * kap
                        S.mfma(f"v_mfma_f32_32x32x16_bf16 v[{a}:{a+15}], a[{MF+16*mu+4*kap}:{MF+16*mu+4*kap+3}], a[{b}:{b+3}], {'0' if kap == 0 else f'v[{a}:{a+15}]'}")
        def mul(job):
            A = AA if job == 0 else AB; L = []
            for x in range(16):
                fr, fi = f"v[{A+2*x}:{A+2*x+1}]", f"v[{A+32+2*x}:{A+32+2*x+1}]"
                al, be = f"v[{CA+4*x}:{CA+4*x+1}]", f"v[{CA+4*x+2}:{CA+4*x+3}]"
                de = f"v[{CD+2*x}:{CD+2*x+1}]" if job == 0 else al
                g0, g1 = ("v[2:3]", "v[4:5]") if x % 2 == 0 else ("v[6:7]", "v[30:31]")
                if x == 0:
                    pr = PR + (6 if job else 0)
                    ar, br = f"v[{pr}:{pr+1}]", f"v[{pr+2}:{pr+3}]"; dr = f"v[{pr+4}:{pr+5}]" if job == 0 else ar
                    m2, m3 = "", ""
                else:
                    ar, br, dr = al, be, de; m2, m3 = " op_sel_hi:[1,0]", " op_sel_hi:[1,0,1]"
                rot = " op_sel:[1,1,0] op_sel_hi:[0,1,1]"
                L += [f"v_pk_mul_f32 {g0}, {fr}, {ar}{m2}", f"v_pk_mul_f32 {g1}, {fr}, {br}{m2}",
                      f"v_pk_fma_f32 {g0}, {fr}, {al}, {g0}{rot} neg_lo:[1,0,0]", f"v_pk_fma_f32 {g1}, {fr}, {be}, {g1}{rot} neg_lo:[1,0,0]",
                      f"v_pk_fma_f32 {g0}, {fi}, {br}, {g0}{m3} neg_lo:[1,0,0] neg_hi:[1,0,0]", f"v_pk_fma_f32 {g1}, {fi}, {dr}, {g1}{m3}",
                      f"v_pk_fma_f32 {g0}, {fi}, {be}, {g0}{rot} neg_hi:[1,0,0]", f"v_pk_fma_f32 {g1}, {fi}, {de}, {g1}{rot} neg_lo:[1,0,0]"]
                a0 = int(g0[2:g0.index(":")]); a1 = int(g1[2:g1.index(":")])
                L += [f"v_cvt_pk_bf16_f32 v{A+x}, v{a0}, v{a0+1}", f"v_cvt_pk_bf16_f32 v{A+32+x}, v{a1}, v{a1+1}"]
                if job == 0: L.append(f"ds_read_b128 v[{CA+4*x}:{CA+4*x+3}], v28 offset:{x*1024}")
            return L
        OB = CD
        def outp(job, ti):
            A = AA if job == 0 else AB; part, nu = ti >> 1, ti & 1
            c = A + 16 + 32 * (ti & 1); ob = OB + 16 * (ti & 1); L = []
            for par in range(2):
                L += [f"v_cvt_pk_bf16_f32 v{ob+4*par+e}, v{c+4*e+par}, v{c+4*e+2+par}" for e in range(4)]
                L.append(mk(f"ds_write_b128 v{11+par}, v[{ob+4*par}:{ob+4*par+3}] offset:{ti*2048}"))
            for h in range(2): L.append(f"ds_read_b128 v[{ob+8+4*h}:{ob+8+4*h+3}], v13 offset:{ti*2048+h*1024}")
            for h in range(2):
                L.append(f"s_add_u32 {sSO}, s{56+job}, {(16*nu+8*h)*57344 + part*14336}")
                L.append(mk(f"buffer_store_dwordx4 v[{ob+8+4*h}:{ob+8+4*h+3}], v10, {sW}, {sSO} offen sc1"))
            return L
        def inv(job):
            A = AA if job == 0 else AB
            for ti in range(4):
                part, nu = ti >> 1, ti & 1; c = A + 16 + 32 * (ti & 1)
                if ti >= 2: p.extend(outp(job, ti - 2))
                for kap in range(4):
                    g = A + 32 * part + 4 * kap
                    S.mfma(f"v_mfma_f32_32x32x16_bf16 v[{c}:{c+15}], v[{g}:{g+3}], a[{MI+16*nu+4*kap}:{MI+16*nu+4*kap+3}], {'0' if kap == 0 else f'v[{c}:{c+15}]'}")
            for ti in (2, 3): p.extend(outp(job, ti))
        fwd(0); self.stamp("fwdA")
        S.add(mul(0), delay=2); fwd(1); S.drain(); self.stamp("mulA")
        S.add(mul(1)); inv(0); S.drain(); self.stamp("mulB")
        inv(1); self.stamp("invB")
        p("s_waitcnt vmcnt(0)")
        p(f"buffer_store_dword {vTAG}, {vL0}, {sW}, s59 offen sc1")
        self.stamp("end"); self.stamp("end_real", real=True)
        self.dump_stamps()
        p("s_endpgm")

    def build(self):
        self.entry(); self.glu(); self.f2()
        p = self.p
        p.ins += self.tailcode.ins
        p.reset(); p("L_done:"); p("s_endpgm")
        ins, st = finalize(p, self.o.get("verbose", False))
        al = align32(ins)
        hdr = open("recurrent_scan__spectral_gfnet__glu_gated_glu__prompt.s.ref").read().split("; Override")[0]
        head = hdr + "; @launch grid=(256,1,1) block=(256,1,1) lds=163840\n" + "\n".join(
            ['.amdgcn_target "amdgcn-amd-amdhsa--gfx950"', ".text", f".globl {KN}", ".p2align 8", f".type {KN},@function", f"{KN}:"])
        tail = [".fill 64, 4, 0xbf800000", '.section .rodata,"a"', ".p2align 6", f".amdhsa_kernel {KN}",
                "  .amdhsa_next_free_vgpr 512", "  .amdhsa_next_free_sgpr 102", "  .amdhsa_accum_offset 256",
                "  .amdhsa_group_segment_fixed_size 0", "  .amdhsa_kernarg_size 80", "  .amdhsa_user_sgpr_count 2",
                "  .amdhsa_user_sgpr_kernarg_segment_ptr 1", "  .amdhsa_system_sgpr_workgroup_id_x 1",
                "  .amdhsa_float_denorm_mode_32 3", ".end_amdhsa_kernel"]
        body = [("" if i.kind == "meta" else "    ") + i.text for i in ins]
        off = 0; f2off = None
        for i in ins:
            if i.kind == "meta":
                if i.op == "L_f2:": f2off = off
                m = re.match(r'\.p2alignl? (\d+)', i.op)
                if m: a = 1 << int(m.group(1)); off = (off + a - 1) // a * a
            else: off += i.size
        self.info = dict(stats=st, align=al, f2off=f2off, total=off)
        return head + "\n" + "\n".join(body + tail) + "\n"

def generate(**o):
    g = Gen(**o); g.build()
    o2 = dict(o); o2["glu_bytes"] = (g.info["f2off"] - 256) & ~3; o2["f2_bytes"] = (g.info["total"] - g.info["f2off"] - 64) & ~3
    g = Gen(**o2); s = g.build()
    return s, g

if __name__ == "__main__":
    o = {}
    out = sys.argv[1] if len(sys.argv) > 1 else "k.s"
    for a in sys.argv[2:]:
        k, v = a.split("="); o[k] = eval(v)
    s, g = generate(**o)
    open(out, "w").write(s)
    print(g.info, g.stamp_names)
```

```python
import sys, struct, math
from collections import deque
from asmlib import *

KN = "recurrent_scan__spectral_gfnet__glu_gated_glu__prompt_kernel"
def f32(x): return "0x%08x" % struct.unpack("<I", struct.pack("<f", x))[0]

WS_E  = 0x0000000
WS_QF = 0x0001000
WS_ZF = 0x0002000
WS_PF = 0x0004000
WS_Q  = 0x0100000
WS_Z  = 0x0300000
WS_P  = 0x0500000
WS_ST = 0x2000000
WS_SIZE = 0x10000000
OOB = 0x40000000

XN0, F1X, HX, MISC = 106496, 98304, 131072, 147456

sX, sG, sU, sD, sW, sO = "s[4:7]", "s[8:11]", "s[12:15]", "s[16:19]", "s[20:23]", "s[24:27]"
sWAVE, sRB, sJ, sTAG, sMI, sNI, sM0, sSO, sEP = "s3", "s28", "s29", "s30", "s31", "s32", "s33", "s34", "s35"
sT = [f"s{i}" for i in range(36, 44)]
sMASK = "s[44:45]"
sLC = [f"s{i}" for i in range(46, 53)]
sPD = [f"s{i}" for i in range(53, 59)]
sPF = [f"s{i}" for i in range(59, 65)]
sC = "s65"; sSPIN = "s66"; sSO2 = "s67"
STAMP0 = 70

def cost(i):
    if i.kind == "meta": return 1 if i.op == "@wait" else 0
    return 2 if i.op in TRANS else 1

class Sched:
    def __init__(self, p, cap=6):
        self.p = p; self.cap = cap; self.q = deque(); self.gap = 0
    def add(self, items, delay=0):
        first = True
        for x in items:
            if isinstance(x, str): x = mk(x)
            self.q.append((self.gap + delay if first else 0, x)); first = False
    def mfma(self, text, fixed=(), used=0):
        self.p(text)
        for f in fixed:
            if isinstance(f, str): f = mk(f)
            self.p.extend([f]); used += cost(f)
        while self.q and self.q[0][0] <= self.gap and used + cost(self.q[0][1]) <= self.cap:
            f = self.q.popleft()[1]; self.p.extend([f]); used += cost(f)
        self.gap += 1
    def drain(self):
        while self.q: self.p.extend([self.q.popleft()[1]])

class Gen:
    def __init__(self, **o):
        self.o = dict(stamps=False, spin=200000, cap=6, PF=2, mapping="r8")
        self.o.update(o)
        self.p = Prog(); self.tailcode = Prog(); self.nstamp = 0; self.npoll = 0; self.stamp_names = {}
    def stamp(self, name, real=False):
        enc = self.o.get("encode")
        if enc:
            if name == "start_real": self.p("s_memrealtime s[70:71]"); self.p("s_memrealtime s[72:73]")
            elif enc == self.role + "." + name: self.p("s_memrealtime s[72:73]")
            if name == "end_real":
                p = self.p; n = self.role
                p("s_waitcnt vmcnt(0) lgkmcnt(0)")
                if self.o.get("encwg") is not None:
                    p(f"s_cmp_lg_u32 s2, {self.o['encwg']}"); p("s_cbranch_scc1 L_done")
                p("s_add_u32 s72, s72, 6000")
                p(f"L_enc_{n}:"); p("s_sleep 2"); p("s_memrealtime s[74:75]"); p("s_waitcnt lgkmcnt(0)"); p("s_sub_u32 s76, s72, s74"); p("s_cmp_gt_i32 s76, 0"); p(f"s_cbranch_scc1 L_enc_{n}")
            return
        if not self.o["stamps"]: return
        n = self.nstamp; self.nstamp += 1
        assert STAMP0 + 2 * n + 1 < 102
        self.stamp_names.setdefault(self.role, []).append(name)
        self.p(f"{'s_memrealtime' if real else 's_memtime'} s[{STAMP0+2*n}:{STAMP0+2*n+1}]")
    def dump_stamps(self):
        if not self.o["stamps"]: return
        p = self.p
        p("s_waitcnt vmcnt(0) lgkmcnt(0)")
        p(f"s_lshl_b32 {sT[0]}, s2, 2"); p(f"s_add_u32 {sT[0]}, {sT[0]}, {sWAVE}"); p(f"s_lshl_b32 {sT[0]}, {sT[0]}, 7"); p(f"s_add_u32 {sT[0]}, {sT[0]}, {WS_ST}")
        p("s_mov_b64 exec, 1"); p("v_mov_b32 v1, 0")
        for n in range(self.nstamp):
            p(f"v_mov_b32 v2, s{STAMP0+2*n}")
            p(f"buffer_store_dword v2, v1, {sW}, {sT[0]} offen offset:{4*n}")
    def poll_check(self, vF, load_text, mask=sMASK):
        n = self.npoll; self.npoll += 1
        L = [mk(f"v_cmp_ne_u32 vcc, {sTAG}, {vF}"), mk(f"s_and_b64 vcc, vcc, {mask}"), mk(f"s_cbranch_scc1 L_slow{n}"), mk(f"L_ok{n}:")]
        t = self.tailcode
        t.reset()
        t(f"L_slow{n}:"); t(f"s_mov_b32 {sSPIN}, {self.o['spin']}")
        t(f"L_spin{n}:"); t(load_text); t("s_waitcnt vmcnt(0)")
        t(f"v_cmp_ne_u32 vcc, {sTAG}, {vF}"); t(f"s_and_b64 vcc, vcc, {mask}"); t(f"s_cbranch_scc0 L_ok{n}")
        t(f"s_sub_u32 {sSPIN}, {sSPIN}, 1"); t(f"s_cmp_lg_u32 {sSPIN}, 0"); t(f"s_cbranch_scc1 L_spin{n}")
        t(f"s_branch L_ok{n}")
        return L

    def srd(self, s, lo, hi, size, delta=0):
        b = int(s[2:s.index(":")]); p = self.p
        if delta: p(f"s_sub_u32 s{b}, {lo}, {delta}"); p(f"s_subb_u32 s{b+1}, {hi}, 0")
        else:
            if f"s{b}" != lo: p(f"s_mov_b32 s{b}, {lo}"); p(f"s_mov_b32 s{b+1}, {hi}")
        p(f"s_mov_b32 s{b+2}, {size + delta}"); p(f"s_mov_b32 s{b+3}, 0x00020000")

    def entry(self):
        p = self.p; self.role = "glu"
        p("s_cmp_ge_u32 s2, 256"); p("s_cbranch_scc1 L_done")
        self.stamp("start_real", real=True); self.stamp("start")
        p("s_load_dwordx2 s[4:5], s[0:1], 0")
        p("s_load_dwordx4 s[36:39], s[0:1], 8")
        p("s_load_dwordx4 s[40:43], s[0:1], 32")
        p("s_load_dwordx4 s[56:59], s[0:1], 48")
        p("s_load_dwordx2 s[20:21], s[0:1], 72")
        p("v_lshrrev_b32 v1, 6, v0"); p("v_lshlrev_b32 v2, 7, v0"); p(f"v_readfirstlane_b32 {sWAVE}, v1")
        p("v_and_b32 v0, 63, v0")
        p("s_and_b32 s50, s2, 7"); p("s_lshr_b32 s51, s2, 3")
        p("s_waitcnt lgkmcnt(0)")
        if self.o.get("encode") == "glu.karg": self.stamp("karg")
        p(f"s_load_dword {sEP}, s[20:21], {WS_E}")
        self.srd(sW, "s20", "s21", WS_SIZE)
        p("s_cmp_ge_u32 s51, 28"); p("s_cbranch_scc1 L_f2")

    def tag(self):
        p = self.p
        p(f"s_mul_i32 {sTAG}, {sEP}, 0x9e3779b1"); p(f"s_add_u32 {sTAG}, {sTAG}, 0x7f4a7c15")

    def code_prefetch(self, label, nbytes, vtmp="a255"):
        p = self.p
        p("s_getpc_b64 s[68:69]")
        p(f"v_min_u32 v2, {nbytes}, v2")
        p(f"global_load_dword {vtmp}, v2, s[68:69]")

    def pi_of(self, dst, src, t1, t2):
        p = self.p
        p(f"v_lshrrev_b32 {t1}, 1, {src}"); p(f"v_sub_u32 {t2}, 64, {t1}")
        p(f"v_cmp_eq_u32 vcc, 1, {src}"); p(f"v_cndmask_b32 {t2}, {t2}, 32, vcc")
        p(f"v_and_b32 {dst}, 1, {src}"); p(f"v_cmp_eq_u32 vcc, 1, {dst}"); p(f"v_cndmask_b32 {dst}, {t1}, {t2}, vcc")

    def glu(self):
        p = self.p; o = self.o; self.role = "glu"
        vL16, vL0, vSGN, vTAG, vROW = "v24", "v25", "v26", "v27", "v28"
        FR, ACC, HP, RAW, TF = 32, 48, 112, 144, 200
        HF = 224
        self.code_prefetch("L_glu", o.get("glu_bytes", 28000))
        p("s_and_b32 s52, s50, 1"); p("s_lshl_b32 s52, s52, 2")
        p(f"s_lshr_b32 {sJ}, s51, 3"); p(f"s_add_u32 {sJ}, {sJ}, s52")
        p(f"s_and_b32 {sRB}, s51, 7"); p(f"s_add_u32 s53, {sRB}, s52")
        p("s_cmp_ge_u32 s51, 24"); p(f"s_cselect_b32 {sJ}, 3, {sJ}"); p(f"s_cselect_b32 {sRB}, s53, {sRB}")
        p("s_lshr_b32 s52, s50, 1"); p("s_lshl_b32 s52, s52, 3"); p(f"s_add_u32 {sRB}, {sRB}, s52")
        self.srd(sX, "s4", "s5", 1835008)
        p(f"s_and_b32 s52, {sJ}, 1"); p("s_lshl_b32 s52, s52, 3"); p(f"s_lshl_b32 s53, {sWAVE}, 4"); p("s_add_u32 s52, s52, s53")
        p("v_lshrrev_b32 v1, 3, v0"); p("v_add_u32 v8, s52, v1"); p("v_xor_b32 v9, 8, v8")
        p("v_and_b32 v7, 7, v0")
        p(f"s_mul_i32 s53, {sRB}, 896")
        for g in range(2):
            self.pi_of("v4", f"v{8+g}", "v5", "v6")
            p("v_mul_u32_u24 v4, 28672, v4"); p(f"v_lshl_add_u32 v4, v7, 4, v4")
            for l in range(7):
                r = RAW + 28 * g + 4 * l
                p(f"buffer_load_dwordx4 v[{r}:{r+3}], v4, {sX}, s53 offen offset:{128*l}")
        e = self.o.get("encode")
        if e == "glu.xiss": self.stamp("xiss")
        if e == "glu.code": p("s_waitcnt vmcnt(14)"); self.stamp("code")
        if e == "glu.x0": p("s_waitcnt vmcnt(13)"); self.stamp("x0")
        if e == "glu.xall": p("s_waitcnt vmcnt(0)"); self.stamp("xall")
        if e == "glu.ep": p("s_waitcnt lgkmcnt(0)"); self.stamp("ep")
        self.srd(sG, "s40", "s41", 1605632); self.srd(sU, "s42", "s43", 1605632, delta=2048)
        self.srd(sD, "s56", "s57", 1605632); self.srd(sO, "s58", "s59", 1835008)
        p(f"s_and_b32 {sMI}, {sWAVE}, 1"); p(f"s_lshr_b32 {sNI}, {sWAVE}, 1"); p(f"s_lshl_b32 {sM0}, {sWAVE}, 12")
        p(f"v_lshlrev_b32 {vL16}, 4, v0")
        p(f"v_cmp_eq_u32 vcc, 0, v0"); p(f"v_mov_b32 {vL0}, {OOB}"); p(f"v_cndmask_b32 {vL0}, {vL0}, 0, vcc")
        p("v_lshrrev_b32 v1, 1, v7")
        p("v_lshlrev_b32 v2, 1, v1")
        p("v_and_b32 v4, 1, v1"); p("v_lshlrev_b32 v4, 9, v4")
        p("v_lshrrev_b32 v5, 2, v7"); p("v_lshl_add_u32 v4, v5, 11, v4")
        p("v_and_b32 v5, 1, v7"); p("v_lshl_add_u32 v4, v5, 3, v4")
        p(f"v_add_u32 v4, {XN0}, v4")
        for g in range(2):
            p(f"v_lshrrev_b32 v5, 5, v{8+g}"); p("v_mul_u32_u24 v5, 28672, v5"); p("v_add_u32 v5, v5, v4")
            p(f"v_and_b32 v6, 31, v{8+g}"); p("v_xor_b32 v6, v6, v2"); p(f"v_lshl_add_u32 v{8+g}, v6, 4, v5")
        p("v_lshrrev_b32 v3, 3, v0"); p("v_and_b32 v4, 2, v3"); p("v_lshlrev_b32 v4, 1, v4"); p("v_xor_b32 v5, v7, v4"); p("v_xor_b32 v6, 2, v5")
        p(f"s_lshl_b32 s52, {sNI}, 5"); p(f"s_add_u32 s52, s52, {sMI}"); p("s_mul_i32 s52, s52, 3584"); p(f"s_lshl_b32 s53, {sJ}, 9"); p("s_add_u32 s52, s52, s53")
        p("v_mul_u32_u24 v1, 7168, v3"); p("v_add_u32 v1, s52, v1")
        p("v_lshl_add_u32 v10, v5, 4, v1"); p("v_lshl_add_u32 v12, v6, 4, v1")
        p(f"v_add_u32 v11, {16*3584-1024}, v10"); p(f"v_add_u32 v13, {16*3584-1024}, v12")
        p(f"s_lshl_b32 s52, {sJ}, 3"); p(f"s_add_u32 s52, s52, {sWAVE}"); p("s_mul_i32 s52, s52, 28672")
        p("v_mul_u32_u24 v1, 896, v3"); p("v_add_u32 v1, s52, v1"); p("v_lshl_add_u32 v17, v5, 4, v1")
        for i in range(1, 4): p(f"v_add_u32 v{17+i}, {i*(7168-1024)}, v17")
        p("v_bfe_u32 v3, v0, 4, 1"); p("v_lshrrev_b32 v4, 5, v0"); p("v_bfe_u32 v5, v0, 2, 2"); p("v_and_b32 v6, 3, v0")
        p("v_lshl_add_u32 v1, v3, 1, v4"); p("v_lshlrev_b32 v1, 10, v1"); p("v_lshl_add_u32 v1, v5, 7, v1"); p("v_lshl_add_u32 v1, v6, 3, v1")
        p("v_and_b32 v2, 2, v5"); p("v_add_u32 v7, v2, v3"); p(f"v_xor_b32 v7, {sWAVE}, v7")
        p("v_lshl_add_u32 v14, v7, 5, v1"); p("v_add_u32 v15, 0x10000, v14"); p("v_add_u32 v16, 0x20000, v14")
        p("v_lshl_add_u32 v1, v4, 2, v5"); p("v_lshlrev_b32 v1, 7, v1")
        p("v_lshl_add_u32 v3, v3, 2, v6"); p("v_and_b32 v6, 1, v3"); p("v_lshrrev_b32 v3, 1, v3"); p("v_lshl_add_u32 v3, v6, 2, v3")
        p("v_lshlrev_b32 v3, 3, v3"); p("v_lshlrev_b32 v2, 5, v2"); p("v_xor_b32 v3, v3, v2"); p("v_add_u32 v29, v1, v3")
        p(f"s_lshl_b32 s52, {sNI}, 6"); p("v_xor_b32 v21, s52, v29"); p("v_add_u32 v22, 0x10000, v21"); p("v_add_u32 v23, 0x20000, v21")
        p("v_and_b32 v1, 31, v0"); p("v_bfe_u32 v2, v1, 2, 1"); p("v_lshrrev_b32 v3, 3, v1"); p("v_and_b32 v4, 3, v1")
        p("v_lshl_add_u32 v4, v3, 2, v4"); p("v_lshl_add_u32 v4, v2, 4, v4"); p(f"s_lshl_b32 s52, {sJ}, 5"); p("v_add_u32 v4, s52, v4")
        p(f"v_lshlrev_b32 {vSGN}, 31, v4"); p(f"v_or_b32 {vSGN}, 1.0, {vSGN}")
        p(f"v_cvt_f32_u32 v5, {sNI}"); p("v_mul_f32 v5, 0x3e800000, v5")
        p(f"s_xor_b32 s52, {sNI}, 1"); p("v_or_b32 v2, s52, v4"); p("v_cmp_eq_u32 vcc, 0, v2")
        p("v_mov_b32 v3, 224"); p("v_cndmask_b32 v4, v4, v3, vcc"); p("v_cndmask_b32 v5, v5, 0, vcc")
        p("v_mov_b32 v30, -1"); p("v_cndmask_b32 v30, v30, 0, vcc")
        p("v_cvt_f32_u32 v4, v4"); p(f"v_mul_f32 v4, {f32(1/448)}, v4")
        p("v_lshrrev_b32 v2, 5, v0"); p("v_lshlrev_b32 v2, 4, v2"); p("v_cvt_f32_u32 v2, v2"); p("v_fma_f32 v5, v2, v4, v5")
        for kap in range(14):
            g, par = kap >> 1, kap & 1
            for e2 in range(4):
                d0 = 32 * g + par + 4 * e2
                p(f"v_fmamk_f32 v1, v4, {f32(d0)}, v5"); p(f"v_fmamk_f32 v2, v4, {f32(d0+2)}, v5")
                p("v_cos_f32 v1, v1"); p("v_cos_f32 v2, v2"); p("s_nop 0")
                p(f"v_cvt_pk_bf16_f32 v{TF+4*kap+e2}, v1, v2")
        p(f"s_lshl_b32 s52, {sMI}, 5"); p("v_and_b32 v1, 31, v0"); p("v_add_u32 v1, s52, v1")
        self.pi_of(vROW, "v1", "v2", "v3")
        p(f"v_cvt_f32_u32 v4, {vROW}"); p("v_mul_f32 v4, 0x3c800000, v4")
        p("v_lshrrev_b32 v2, 5, v0"); p("v_lshlrev_b32 v2, 1, v2")
        p(f"v_lshlrev_b32 v7, 31, {vROW}")
        for tl in range(2):
            p(f"s_xor_b32 s52, {sMI}, {tl}"); p("s_lshl_b32 s52, s52, 4"); p("v_add_u32 v3, s52, v2")
            p("v_cmp_eq_u32 vcc, 0, v3"); p("v_cndmask_b32 v6, 0, v7, vcc")
            p("v_cvt_f32_u32 v3, v3"); p("v_fmaak_f32 v5, v3, v4, 0x3e000000")
            for kk in range(2):
                for x in range(4):
                    dp = 8 * kk + 4 * (x >> 1) + (x & 1)
                    p(f"v_fmamk_f32 v1, v4, {f32(dp)}, v5"); p("v_cos_f32 v3, v1"); p("v_sin_f32 v1, v1")
                    if dp == 0: p("v_xor_b32 v3, v3, v6")
                    p("v_cvt_pk_bf16_f32 v1, v1, v3"); p(f"v_accvgpr_write_b32 a{HF+8*tl+4*kk+x}, v1")
        self.tag(); p(f"v_mov_b32 {vTAG}, {sTAG}")
        p(f"s_mov_b32 {sC}, 0xbfb8aa3b")
        self.stamp("setup")
        for g in range(2):
            U = 32 + 56 * g; R = RAW + 28 * g
            for k in range(28):
                p(f"v_lshlrev_b32 v{U+2*k}, 16, v{R+k}"); p(f"v_and_b32 v{U+2*k+1}, 0xffff0000, v{R+k}")
                if k == 0:
                    p(f"v_pk_mul_f32 v[4:5], v[{U}:{U+1}], v[{U}:{U+1}]")
                else:
                    p(f"v_pk_add_f32 v[2:3], v[{U if k == 1 else 2}:{U+1 if k == 1 else 3}], v[{U+2*k}:{U+2*k+1}]")
                    p(f"v_pk_fma_f32 v[4:5], v[{U+2*k}:{U+2*k+1}], v[{U+2*k}:{U+2*k+1}], v[4:5]")
            p("v_add_f32 v2, v2, v3"); p("v_add_f32 v4, v4, v5")
            for dpp in ("quad_perm:[1,0,3,2]", "quad_perm:[2,3,0,1]", "row_half_mirror"):
                p(f"v_add_f32_dpp v2, v2, v2 {dpp} row_mask:0xf bank_mask:0xf"); p(f"v_add_f32_dpp v4, v4, v4 {dpp} row_mask:0xf bank_mask:0xf")
            p(f"v_mul_f32 v2, {f32(1/448)}, v2"); p(f"v_mul_f32 v4, {f32(1/448)}, v4")
            p("v_fma_f32 v4, -v2, v2, v4"); p("v_max_f32 v4, 0, v4")
            p("v_cvt_pk_bf16_f32 v2, v2, v4"); p("v_and_b32 v4, 0xffff0000, v2"); p("v_lshlrev_b32 v2, 16, v2")
            p(f"v_add_f32 v4, {f32(1e-5)}, v4"); p("v_cvt_pk_bf16_f32 v4, v4, v4"); p("v_lshlrev_b32 v4, 16, v4")
            p("v_sqrt_f32 v4, v4"); p("v_cvt_pk_bf16_f32 v4, v4, v4"); p("v_lshlrev_b32 v4, 16, v4")
            p("v_rcp_f32 v4, v4"); p("v_mul_f32 v5, -1.0, v2") ; p("v_mul_f32 v5, v5, v4")
            for l in range(7):
                for k in range(4 * l, 4 * l + 4):
                    p(f"v_pk_fma_f32 v[{U+2*k}:{U+2*k+1}], v[{U+2*k}:{U+2*k+1}], v[4:5], v[4:5] op_sel:[0,0,1] op_sel_hi:[1,0,1]")
                b = U + 8 * l; r = R + 4 * l
                p(f"v_cvt_pk_bf16_f32 v{r}, v{b}, v{b+2}"); p(f"v_cvt_pk_bf16_f32 v{r+1}, v{b+4}, v{b+6}")
                p(f"v_cvt_pk_bf16_f32 v{r+2}, v{b+1}, v{b+3}"); p(f"v_cvt_pk_bf16_f32 v{r+3}, v{b+5}, v{b+7}")
                p(f"ds_write2st64_b64 v{8+g}, v[{r}:{r+1}], v[{r+2}:{r+3}] offset0:{8*l} offset1:{8*l+2}")
        p("v_lshrrev_b32 v5, 5, v0"); p("v_lshlrev_b32 v5, 5, v5"); p(f"v_xor_b32 v5, v5, {vL16}")
        p(f"s_mul_i32 s52, {sMI}, 28672"); p(f"s_add_u32 s53, s52, {XN0}"); p(f"s_sub_u32 s52, {XN0+28672}, s52")
        p("v_add_u32 v1, s53, v5"); p("v_add_u32 v3, s52, v5"); p("v_xor_b32 v2, 64, v1"); p("v_xor_b32 v4, 64, v3")
        p("s_waitcnt lgkmcnt(0)"); p("s_barrier")
        self.stamp("ln")
        NST = 42
        def dma_group(st):
            L = [mk(f"s_add_u32 m0, {sM0}, {(st % 9) * 16384}")]
            if st < 28:
                q, s = divmod(st, 7)
                L.append(mk(f"s_mov_b32 {sSO}, {64*s*3584 + q*128}"))
                L += [mk(f"buffer_load_dwordx4 v{10+i}, {sG if i < 2 else sU}, {sSO} offen offset:{i*1024} lds", tok=("dma", st)) for i in range(4)]
            else:
                s = st - 28
                if s < 10: u, h = s >> 1, s & 1
                else: u, h = 5 + (s & 1), (s - 10) >> 1
                L.append(mk(f"s_add_u32 {sSO}, {sLC[u]}, {h*114688}"))
                L += [mk(f"buffer_load_dwordx4 v{17+i}, {sD}, {sSO} offen offset:{i*1024} lds", tok=("dma", st)) for i in range(4)]
            return L
        dq = deque(); self.issued = 0
        def want(upto):
            while self.issued < min(upto, NST):
                dq.extend(dma_group(self.issued)); self.issued += 1
        def take_dma():
            L = []
            while dq:
                f = dq.popleft(); L.append(f)
                if f.kind == "vmem": break
            return L
        def xread(t, kap):
            return mk(f"ds_read_b128 a[{112*t+4*kap}:{112*t+4*kap+3}], v{1 + 2*t + ((kap >> 1) & 1)} offset:{kap*1024}")
        S = Sched(p, o["cap"])
        want(3)
        for k in range(3): p.extend([xread(0, k)])
        for kap in range(28):
            a = ACC + 16 * (kap // 14); t = TF + 4 * (kap % 14)
            fx = []
            if kap + 3 < 28: fx.append(xread(0, kap + 3))
            fx.append(xread(1, kap))
            fx += take_dma()
            S.mfma(f"v_mfma_f32_32x32x16_bf16 v[{a}:{a+15}], a[{4*kap}:{4*kap+3}], v[{t}:{t+3}], {'0' if kap % 14 == 0 else f'v[{a}:{a+15}]'}", fx)
        self.gemm2_scalars()
        for r in range(16): p(f"v_fma_f32 v{ACC+r}, v{ACC+16+r}, {vSGN}, v{ACC+r}")
        for r in range(8): p(f"v_cvt_pk_bf16_f32 v{FR+r}, v{ACC+2*r}, v{ACC+2*r+1}")
        p(f"s_lshl_b32 s36, {sWAVE}, 11"); p(f"s_add_u32 s36, s36, {F1X}"); p(f"v_add_u32 v5, s36, {vL16}"); p("v_xor_b32 v6, 2048, v5")
        p(f"ds_write_b128 v5, v[{FR}:{FR+3}]"); p(f"ds_write_b128 v5, v[{FR+4}:{FR+7}] offset:1024")
        p("s_waitcnt lgkmcnt(0)"); p("s_barrier")
        p(f"ds_read_b128 v[{FR+8}:{FR+11}], v6"); p(f"ds_read_b128 v[{FR+12}:{FR+15}], v6 offset:1024")
        want(5)
        for k in range(4):
            S.mfma(f"v_mfma_f32_32x32x16_bf16 v[{ACC}:{ACC+15}], a[{HF+4*k}:{HF+4*k+3}], v[{FR+4*k}:{FR+4*k+3}], {'0' if k == 0 else f'v[{ACC}:{ACC+15}]'}", take_dma() + take_dma())
        p("v_lshrrev_b32 v5, 5, v0"); p("v_mul_u32_u24 v5, 114688, v5"); p("v_and_b32 v6, 31, v0"); p("v_lshl_add_u32 v5, v6, 2, v5")
        p(f"s_mul_i32 s36, {sMI}, {16*57344}"); p(f"s_lshl_b32 s37, {sJ}, 1"); p(f"s_add_u32 s37, s37, {sNI}"); p("s_lshl_b32 s37, s37, 12")
        p("s_add_u32 s36, s36, s37"); p(f"s_lshl_b32 s37, {sRB}, 7"); p("s_add_u32 s36, s36, s37"); p(f"s_add_u32 s36, s36, {WS_Q}")
        for x in range(8):
            p(f"v_cvt_pk_bf16_f32 v{FR+x}, v{ACC+2*x}, v{ACC+2*x+1}")
            p(f"s_add_u32 {sSO2}, s36, {(4*(x >> 1) + (x & 1))*57344}")
            p(f"buffer_store_dword v{FR+x}, v5, {sW}, {sSO2} offen sc1", tok="qst")
        p(f"s_lshl_b32 s37, {sJ}, 1"); p(f"s_add_u32 s37, s37, {sMI}"); p("s_lshl_b32 s37, s37, 5"); p(f"s_add_u32 s37, s37, {sRB}")
        p("s_lshl_b32 s37, s37, 1"); p(f"s_add_u32 s37, s37, {sNI}"); p("s_lshl_b32 s37, s37, 2"); p(f"s_add_u32 s37, s37, {WS_QF}")
        self.stamp("f1")
        PF = o["PF"]; NB = PF + 1
        def reads1(n):
            st, k = divmod(n, 4); a = (st % 9) * 16384 + k * 4096; b = FR + 4 * (n % NB)
            return [mk(f"ds_read_b64_tr_b16 v[{b+2*i}:{b+2*i+1}], v{14 + (a >> 16)} offset:{(a & 0xffff) + i*512}") for i in range(2)]
        def epilogue(q):
            L = []
            for t in range(2):
                a = ACC + 32 * (q & 1) + 16 * t
                for half in range(2):
                    E = range(4 * half, 4 * half + 4)
                    L += [f"v_mul_f32 v{a+e}, {sC}, v{a+e}" for e in E]
                    L += [f"v_exp_f32 v{a+e}, v{a+e}" for e in E]
                    L += [f"v_add_f32 v{a+e}, 1.0, v{a+e}" for e in E]
                    L += [f"v_rcp_f32 v{a+e}, v{a+e}" for e in E]
                    L += [f"v_mul_f32 v{a+e}, v{a+e}, v{a+8+e}" for e in E]
                    L += [f"v_cvt_pk_bf16_f32 v{HP+8*q+4*t+2*half+e//2}, v{a+4*half+e}, v{a+4*half+e+1}" for e in (0, 2)]
            return L
        LEAD = o.get("lead", 5)
        p.wait_tok(("dma", 0)); p("s_barrier")
        p(".p2alignl 5, 0xbf800000")
        for n in range(PF): p.extend(reads1(n))
        want(LEAD + 1)
        for n in range(112):
            q, kap = divmod(n, 28)
            fixed = [[], []]; nn = n + PF
            if nn % 4 == 0:
                st = nn // 4
                fixed[0] += [mkwait(("dma", st)), mk("s_barrier")]
                if st <= 26: want(st + LEAD + 1)
                if st == 4: S.add([mkwait("qst"), f"buffer_store_dword {vTAG}, {vL0}, {sW}, s37 offen sc1"])
            if nn < 112:
                r = reads1(nn); fixed[0].append(r[0]); fixed[1].append(r[1])
            fixed[1] += take_dma()
            if kap == 1 and q > 0: S.add(epilogue(q - 1))
            if kap == 27: S.drain()
            b = FR + 4 * (n % NB)
            for t in range(2):
                a = ACC + 32 * (q & 1) + 16 * t
                S.mfma(f"v_mfma_f32_32x32x16_bf16 v[{a}:{a+15}], v[{b}:{b+3}], a[{112*t+4*kap}:{112*t+4*kap+3}], {'0' if kap == 0 else f'v[{a}:{a+15}]'}", fixed[t], used=t)
        assert not dq
        self.stamp("g1")
        p(f"s_lshl_b32 s36, {sMI}, 14"); p(f"s_add_u32 s36, s36, {HX}"); p(f"v_add_u32 v2, s36, {vL16}")
        p(f"s_lshl_b32 s36, {sWAVE}, 10"); p("v_add_u32 v3, s36, v2"); p("v_xor_b32 v4, 0x4000, v3")
        ep = epilogue(3)
        wr = lambda q, t: f"ds_write_b128 v{3+t}, v[{HP+8*q+4*t}:{HP+8*q+4*t+3}] offset:{q*4096}"
        p.extend(ep[:44]); p(wr(3, 0))
        others = [wr(q, t) for q in range(3) for t in range(2)]
        for i, x in enumerate(ep[44:]):
            p(x)
            if i % 7 == 3 and others: p(others.pop())
        assert not others
        p(wr(3, 1))
        p("s_waitcnt lgkmcnt(0)"); p("s_barrier")
        self.stamp("hx")
        PF2 = 3; NB2 = 4
        def reads2(n):
            u, k = divmod(n, 16); b = FR + 4 * (n % NB2)
            if u < 5:
                st = 28 + 2 * u + (k >> 3); a = (st % 9) * 16384 + (k & 7) * 2048; v = 21 + (a >> 16)
            else:
                a = (k >> 3) * 32768 + (k & 7) * 2048; v = 5 + (u - 5)
            return [mk(f"ds_read_b64_tr_b16 v[{b+2*i}:{b+2*i+1}], v{v} offset:{(a & 0xffff) + i*1024}") for i in range(2)]
        href = lambda k: mk(f"ds_read_b128 a[{4*k}:{4*k+3}], v2 offset:{k*1024}")
        want(28 + LEAD + 1)
        for n in range(PF2): p.extend([href(n)] + reads2(n))
        SEL = RAW; XT = RAW + 8; vZF = "v7"; PK = RAW + 16
        fl = []
        fl += [f"s_and_b32 s36, {sJ}, 1", f"s_xor_b32 s36, s36, {sNI}", "s_lshl_b32 s36, s36, 6", f"s_lshl_b32 s38, {sNI}, 14", "s_add_u32 s38, s38, 32768",
               "v_xor_b32 v6, s36, v29", "v_add_u32 v6, s38, v6", "v_xor_b32 v5, 64, v6"]
        fl += ["v_lshrrev_b32 v8, 5, v0", "v_and_b32 v9, 31, v0", "v_lshlrev_b32 v8, 2, v8", "v_sub_u32 v8, v9, v8", "v_and_b32 v9, 1, v8", "v_lshlrev_b32 v9, 4, v9",
               "v_mov_b32 v1, 0x3f80", "v_lshlrev_b32 v9, v9, v1", "v_and_b32 v8, -2, v8"]
        for kk in range(2):
            for x in range(4):
                fl += [f"v_cmp_eq_u32 vcc, {16*kk + 8*(x >> 1) + 2*(x & 1)}, v8", "s_nop 1", f"v_cndmask_b32 v{SEL+4*kk+x}, 0, v9, vcc"]
        fl += [f"v_and_b32 v{TF+r}, v{TF+r}, v30" for r in range(56)]
        fl += [f"v_lshrrev_b32 v8, 16, {vSGN}", f"v_and_b32 v9, 0xffff0000, v{TF}", "v_or_b32 v8, v8, v9", f"s_xor_b32 s36, {sNI}, 1", "v_lshrrev_b32 v9, 5, v0",
               "v_or_b32 v9, s36, v9", "v_cmp_eq_u32 vcc, 0, v9", "s_nop 1", f"v_cndmask_b32 v{TF}, v{TF}, v8, vcc"]
        fl += [f"v_mul_u32_u24 v31, 28672, {vROW}", "v_lshrrev_b32 v8, 5, v0", "v_lshl_add_u32 v31, v8, 5, v31", f"s_mul_i32 s36, {sRB}, 896", f"s_lshl_b32 s38, {sJ}, 6",
               "s_add_u32 s36, s36, s38", f"s_mul_i32 s38, {sNI}, 448", "s_add_u32 s36, s36, s38", "v_add_u32 v31, s36, v31",
               f"buffer_load_dwordx4 v[{XT}:{XT+3}], v31, {sX}, 0 offen", f"buffer_load_dwordx4 v[{XT+4}:{XT+7}], v31, {sX}, 0 offen offset:16"]
        fl += [f"s_lshl_b32 s39, {sMI}, 8", f"s_add_u32 s39, s39, {WS_ZF}", "v_lshlrev_b32 v12, 2, v0",
               f"s_lshl_b32 s40, {sRB}, 1", f"s_add_u32 s40, s40, {sMI}", "s_lshl_b32 s40, s40, 1", f"s_add_u32 s40, s40, {sNI}", "s_mul_i32 s40, s40, 14336", f"s_add_u32 s40, s40, {WS_Z}",
               f"s_lshl_b32 s41, {sWAVE}, 2", "s_lshr_b32 s41, 0x0876, s41", "s_and_b32 s41, s41, 15", "s_lshl_b32 s41, s41, 14",
               "v_bfe_u32 v8, v0, 1, 4", "v_lshrrev_b32 v9, 5, v0", "v_lshlrev_b32 v9, 1, v9", "v_bfe_u32 v10, v0, 2, 2", "v_xor_b32 v9, v9, v10",
               "v_and_b32 v10, 1, v0", "v_lshl_add_u32 v9, v9, 1, v10", "v_lshlrev_b32 v9, 4, v9", "v_lshl_add_u32 v9, v8, 7, v9", "v_add_u32 v10, s41, v9", "v_xor_b32 v11, 32, v10"]
        low = deque(mk(x) for x in fl)
        zload = f"buffer_load_dword {vZF}, v12, {sW}, s39 offen sc1"
        def zdma():
            L = []
            for g in range(4):
                L += [mk(f"s_add_u32 m0, s41, {g*4096}"), mk(f"s_add_u32 {sSO}, s40, {g*4096}")]
                L += [mk(f"buffer_load_dwordx4 {vL16}, {sW}, {sSO} offen offset:{i*1024} sc1 lds", tok="zd") for i in range(4 if g < 3 else 2)]
            return L
        for n in range(112):
            u, k = divmod(n, 16)
            fx = []; nn = n + PF2
            if nn % 8 == 0 and nn < 96:
                uu, kk = divmod(nn, 16)
                if uu < 5: toks = [28 + nn // 8]
                else: toks = [38 + 2 * (kk >> 3), 39 + 2 * (kk >> 3)]
                fx += [mkwait(*[("dma", s) for s in toks]), mk("s_barrier")]
                st = 28 + nn // 8
                want(min(st + LEAD + 1, 35) if st < 31 else st + LEAD + 1)
            if nn < 112: fx += reads2(nn)
            if nn < 16: fx.append(href(nn))
            if n % 2 == 1 or u >= 5: fx += take_dma()
            if k == 2 and u > 0:
                a = ACC + 16 * ((u - 1) & 1)
                L = [f"v_cvt_pk_bf16_f32 v{PK+r}, v{a+2*r}, v{a+2*r+1}" for r in range(8)]
                L.insert(4, mk(f"buffer_store_dwordx4 v[{PK}:{PK+3}], {vL16}, {sW}, {sPD[u-1]} offen sc1", tok=("ps", u - 1)))
                L.append(mk(f"buffer_store_dwordx4 v[{PK+4}:{PK+7}], {vL16}, {sW}, {sPD[u-1]} offen offset:1024 sc1", tok=("ps", u - 1)))
                S.add(L)
            if k == 12 and u >= 3:
                S.add([mkwait(("ps", u - 3)), f"buffer_store_dword {vTAG}, {vL0}, {sW}, {sPF[u-3]} offen sc1"])
            if n == 64:
                while low: S.add([low.popleft()])
                S.add([zload, f"s_mov_b64 {sMASK}, -1"])
            if n == 80:
                S.drain(); assert not dq
                p.extend(self.poll_check(vZF, zload))
                dq.extend(zdma())
            a = ACC + 16 * (u & 1); b = FR + 4 * (n % NB2)
            if not S.q and low:
                S.add([low.popleft() for _ in range(min(3, len(low)))])
            S.mfma(f"v_mfma_f32_32x32x16_bf16 v[{a}:{a+15}], v[{b}:{b+3}], a[{4*k}:{4*k+3}], {'0' if k == 0 else f'v[{a}:{a+15}]'}", fx, used=1)
        S.drain(); assert not dq
        self.stamp("g2")
        Y = ACC
        p.wait_tok(("ps", 4)); p(f"buffer_store_dword {vTAG}, {vL0}, {sW}, {sPF[4]} offen sc1")
        p.wait_tok("zd")
        ZF = 64; EO = ACC + 32
        for kap in range(14): p(f"ds_read_b128 a[{ZF+4*kap}:{ZF+4*kap+3}], v{10 + (kap & 1)} offset:{(kap >> 1)*2048}")
        p.wait_tok(("ps", 5)); p(f"buffer_store_dword {vTAG}, {vL0}, {sW}, {sPF[5]} offen sc1")
        pre = [f"s_mul_i32 s36, {sRB}, 7", f"s_add_u32 s36, s36, {sJ}", "s_lshl_b32 s36, s36, 2", f"s_add_u32 s36, s36, {sWAVE}",
               "s_lshl_b32 s39, s36, 5", f"s_add_u32 s39, s39, {WS_PF}", "s_mul_i32 s40, s36, 14336", f"s_add_u32 s40, s40, {WS_P}",
               f"s_lshl_b32 s44, 1, {sJ}", "s_xor_b32 s44, s44, 0x7f", "s_mov_b32 s45, 0", "v_min_u32 v12, 28, v12",
               f"s_lshl_b32 s36, {sWAVE}, 12", f"s_add_u32 s36, s36, {MISC}", f"v_add_u32 v8, s36, {vL16}",
               f"s_lshl_b32 s36, {sMI}, 12", f"s_lshl_b32 s38, {sNI}, 11", "s_add_u32 s36, s36, s38", f"s_add_u32 s36, s36, {MISC}", f"v_add_u32 v9, s36, {vL16}", "v_xor_b32 v13, 0x1000, v9"]
        S.add(pre)
        pload = f"buffer_load_dword {vZF}, v12, {sW}, s39 offen sc1"
        for kap in range(14):
            a = EO + 16 * (kap & 1); t = TF + 4 * kap
            S.mfma(f"v_mfma_f32_32x32x16_bf16 v[{a}:{a+15}], a[{ZF+4*kap}:{ZF+4*kap+3}], v[{t}:{t+3}], {'0' if kap < 2 else f'v[{a}:{a+15}]'}")
        S.drain()
        PM = HP
        for r in range(8):
            e0, o0 = EO + 2 * r, EO + 16 + 2 * r
            p(f"v_pk_add_f32 v[2:3], v[{e0}:{e0+1}], v[{o0}:{o0+1}]")
            p(f"v_pk_add_f32 v[4:5], v[{e0}:{e0+1}], v[{o0}:{o0+1}] neg_lo:[0,1] neg_hi:[0,1]")
            p(f"v_cvt_pk_bf16_f32 v{PM+r}, v2, v3"); p(f"v_cvt_pk_bf16_f32 v{PM+8+r}, v4, v5")
            if r % 4 == 3:
                p(f"ds_write_b128 v8, v[{PM+r-3}:{PM+r}] offset:{(r >> 2)*1024}"); p(f"ds_write_b128 v8, v[{PM+8+r-3}:{PM+8+r}] offset:{2048+(r >> 2)*1024}")
        p(pload)
        p("s_waitcnt lgkmcnt(0)"); p("s_barrier")
        p(f"s_or_b32 s36, s2, {sWAVE}"); p("s_cmp_eq_u32 s36, 0"); p(f"s_cselect_b32 s36, {WS_E}, {OOB}"); p(f"s_add_u32 s38, {sEP}, 1"); p("v_mov_b32 v1, s38")
        G = 128
        for i in range(8):
            tl, part, kk = i >> 2, (i >> 1) & 1, i & 1
            p(f"ds_read_b128 a[{G+4*i}:{G+4*i+3}], {'v9' if tl == 0 else 'v13'} offset:{part*8192 + kk*1024}")
        p(f"buffer_store_dword v1, {vL0}, {sW}, s36 offen sc1")
        SA = ACC + 16
        for i in range(8):
            tl, part, kk = i >> 2, (i >> 1) & 1, i & 1
            p(f"v_mfma_f32_32x32x16_bf16 v[{SA}:{SA+15}], a[{G+4*i}:{G+4*i+3}], a[{HF+8*tl+4*kk}:{HF+8*tl+4*kk+3}], {'0' if i == 0 else f'v[{SA}:{SA+15}]'}")
        self.stamp("f3")
        p.extend(self.poll_check(vZF, pload))
        self.stamp("pflag")
        PA = 160
        for i in range(6):
            p(f"s_add_u32 s36, {sJ}, {1+i}"); p("s_cmp_ge_u32 s36, 7"); p("s_cselect_b32 s38, 7, 0"); p("s_sub_u32 s36, s36, s38")
            p("s_lshl_b32 s36, s36, 11"); p("s_add_u32 s36, s36, s40")
            for h in range(2):
                p(f"buffer_load_dwordx4 a[{PA+8*i+4*h}:{PA+8*i+4*h+3}], {vL16}, {sW}, s36 offen offset:{h*1024} sc1")
        for i in range(12):
            h = i & 1
            p(f"v_mfma_f32_32x32x16_bf16 v[{Y}:{Y+15}], v[{SEL+4*h}:{SEL+4*h+3}], a[{PA+4*i}:{PA+4*i+3}], v[{Y}:{Y+15}]")
        self.stamp("psum")
        Tm = EO
        for half in range(2):
            E = range(8 * half, 8 * half + 8)
            for e in E: p(f"v_mul_f32 v{Tm+e}, {sC}, v{Y+e}")
            for e in E: p(f"v_exp_f32 v{Tm+e}, v{Tm+e}")
            for e in E: p(f"v_mul_f32 v{Y+e}, v{Y+e}, v{SA+e}")
            for e in E: p(f"v_add_f32 v{Tm+e}, 1.0, v{Tm+e}")
            for e in E: p(f"v_rcp_f32 v{Tm+e}, v{Tm+e}")
            for e in E: p(f"v_lshlrev_b32 v{SA+e}, 16, v{XT+e//2}" if e % 2 == 0 else f"v_and_b32 v{SA+e}, 0xffff0000, v{XT+e//2}")
            for e in E: p(f"v_fma_f32 v{Y+e}, v{Y+e}, v{Tm+e}, v{SA+e}")
            for e in range(4): p(f"v_cvt_pk_bf16_f32 v{PK+4*half+e}, v{Y+8*half+2*e}, v{Y+8*half+2*e+1}")
            p(f"buffer_store_dwordx4 v[{PK+4*half}:{PK+4*half+3}], v31, {sO}, 0 offen offset:{16*half}")
        self.stamp("end"); self.stamp("end_real", real=True)
        self.dump_stamps()
        p("s_endpgm")

    def gemm2_scalars(self):
        p = self.p
        packs = []
        for j in range(7):
            LA, LB = j >> 1, (j + 7) >> 1
            order = [c % 7 for c in range(LB + 1, LB + 8) if c % 7 not in (LA, LB)] + [LA, LB]
            packs.append(sum(c << (4 * i) for i, c in enumerate(order)))
        p(f"s_mov_b32 s36, {packs[0]}")
        for j in range(1, 7):
            p(f"s_cmp_eq_u32 {sJ}, {j}"); p(f"s_cselect_b32 s36, {packs[j]}, s36")
        p(f"s_mul_i32 s37, {sRB}, 28"); p(f"s_add_u32 s37, s37, {sMI}")
        p(f"s_lshl_b32 s40, {sJ}, 11"); p(f"s_add_u32 s40, s40, {WS_P}"); p(f"s_lshl_b32 s41, {sJ}, 2"); p(f"s_add_u32 s41, s41, {WS_PF}")
        for u in range(7):
            p(f"s_bfe_u32 s38, s36, {(4*u) | (4 << 16)}"); p(f"s_lshl_b32 {sLC[u]}, s38, 7")
            if u < 5:
                p("s_lshl_b32 s38, s38, 1"); p(f"s_add_u32 s38, s38, {sNI}")
            elif u == 5:
                p(f"s_mul_i32 s38, {sNI}, 7"); p(f"s_add_u32 s38, s38, {sJ}"); p("s_xor_b32 s38, s38, 1")
            else: continue
            p("s_cmp_ge_u32 s38, 7"); p("s_cselect_b32 s39, 26, 0"); p("s_lshl_b32 s38, s38, 2"); p("s_sub_u32 s38, s38, s39"); p("s_add_u32 s38, s38, s37")
            p(f"s_mul_i32 {sPD[u]}, s38, 14336"); p(f"s_add_u32 {sPD[u]}, {sPD[u]}, s40")
            p(f"s_lshl_b32 {sPF[u]}, s38, 5"); p(f"s_add_u32 {sPF[u]}, {sPF[u]}, s41")

    def f2(self):
        p = self.p; o = self.o; self.role = "f2"
        p.reset(); self.nstamp = 2 if o["stamps"] else 0
        if o["stamps"]: self.stamp_names["f2"] = ["start_real", "start"]
        p(".p2alignl 6, 0xbf800000")
        p("L_f2:")
        p("s_waitcnt lgkmcnt(0)")
        self.code_prefetch("L_f2", o.get("f2_bytes", 16000))
        sP, sSTEP, sTA, sTB = sRB, sJ, sMI, sNI
        sWR, sWI = sG, sU
        vL16, vL0, vTAG = "v24", "v25", "v27"
        p(f"s_lshl_b32 {sP}, s50, 2"); p(f"s_add_u32 {sP}, {sP}, s51"); p(f"s_sub_u32 {sP}, {sP}, 28")
        self.srd(sWR, "s36", "s37", 921600); self.srd(sWI, "s38", "s39", 921600)
        p(f"s_cmp_eq_u32 {sP}, 0"); p(f"s_cselect_b32 {sSTEP}, 32, 64"); p("s_cselect_b64 s[46:47], -1, 0")
        self.tag(); p(f"v_mov_b32 {vTAG}, {sTAG}")
        p(f"v_lshlrev_b32 {vL16}, 4, v0")
        p(f"v_cmp_eq_u32 vcc, 0, v0"); p(f"v_mov_b32 {vL0}, {OOB}"); p(f"v_cndmask_b32 {vL0}, {vL0}, 0, vcc")
        p("v_lshrrev_b32 v1, 5, v0"); p("v_and_b32 v2, 31, v0")
        for i in range(8):
            p(f"s_lshl_b32 s52, {sWAVE}, 3"); p(f"s_add_u32 s52, s52, {i}"); p(f"s_mul_i32 s53, s52, {sSTEP}"); p(f"s_add_u32 s53, s53, {sP}")
            p("s_sub_u32 s54, 2048, s53"); p("s_cmp_eq_u32 s53, 0"); p("s_cselect_b32 s54, 1024, s54")
            p("s_mul_i32 s53, s53, 450"); p("s_mul_i32 s54, s54, 450"); p("s_and_b32 s53, s53, -16"); p("s_and_b32 s54, s54, -16")
            p("v_mov_b32 v4, s53"); p("v_mov_b32 v5, s54"); p("v_cmp_eq_u32 vcc, 0, v1"); p("v_cndmask_b32 v4, v5, v4, vcc"); p("v_lshl_add_u32 v4, v2, 4, v4")
            p("s_lshl_b32 m0, s52, 10"); p(f"buffer_load_dwordx4 v4, {sWR}, 0 offen lds")
            p("s_add_u32 m0, m0, 32768"); p(f"buffer_load_dwordx4 v4, {sWI}, 0 offen lds")
        MF, MI, IN = 0, 32, 64
        p("v_and_b32 v3, 1, v0"); p("v_bfe_u32 v4, v0, 1, 4")
        for mu in range(2):
            p(f"v_add_u32 v5, {16*mu}, v4"); p(f"v_mul_lo_u32 v6, v5, {sSTEP}"); p(f"v_add_u32 v6, {sP}, v6")
            p("v_cvt_f32_u32 v7, v3"); p("v_mul_f32 v7, 0x3e800000, v7")
            p("v_xor_b32 v8, 1, v3"); p("v_or_b32 v8, v8, v6"); p("v_cmp_eq_u32 vcc, 0, v8")
            p("v_mov_b32 v9, 1024"); p("v_cndmask_b32 v6, v6, v9, vcc"); p("v_cndmask_b32 v7, v7, 0, vcc")
            p("v_cvt_f32_u32 v6, v6"); p("v_mul_f32 v6, 0x3a000000, v6")
            p("v_lshlrev_b32 v8, 2, v1"); p("v_cvt_f32_u32 v8, v8"); p("v_fma_f32 v7, v8, v6, v7")
            p("v_and_b32 v8, 1, v5"); p("v_cvt_f32_u32 v8, v8"); p("v_cndmask_b32 v12, 0, v8, s[46:47]"); p("v_sub_f32 v10, 1.0, v12")
            p("v_cndmask_b32 v11, 1.0, 0, s[46:47]")
            for kap in range(4):
                for x in range(4):
                    p(f"v_fmamk_f32 v8, v6, {f32(8*kap+x)}, v7"); p("v_cos_f32 v9, v8"); p("v_sin_f32 v8, v8"); p("v_mul_f32 v13, v9, v12")
                    p("v_fma_f32 v8, v8, v11, v13"); p("v_mul_f32 v9, v9, v10"); p("v_cvt_pk_bf16_f32 v8, v9, v8"); p(f"v_accvgpr_write_b32 a{MF+16*mu+4*kap+x}, v8")
        for nu in range(2):
            p(f"v_add_u32 v5, {16*nu}, v4"); p("v_cvt_f32_u32 v6, v5"); p("v_mul_f32 v6, 0x3a000000, v6")
            p("v_cvt_f32_u32 v7, v3"); p("v_mul_f32 v7, 0xbe800000, v7"); p("v_cndmask_b32 v7, v7, 0, s[46:47]")
            p(f"v_lshlrev_b32 v8, 1, v1"); p(f"v_mul_lo_u32 v8, v8, {sSTEP}"); p(f"v_add_u32 v14, {sP}, v8"); p("v_cvt_f32_u32 v8, v14"); p("v_fma_f32 v7, v8, v6, v7")
            p(f"v_cvt_f32_u32 v8, {sSTEP}"); p("v_mul_f32 v6, v6, v8")
            p("v_cvt_f32_u32 v8, v3"); p("v_cndmask_b32 v11, 1.0, v8, s[46:47]"); p("v_sub_f32 v8, 1.0, v8"); p("v_cndmask_b32 v10, 1.0, v8, s[46:47]")
            p("v_lshlrev_b32 v12, 31, v5"); p("v_xor_b32 v12, -1.0, v12")
            for x in range(16):
                sig = 16 * (x >> 3) + 4 * ((x >> 1) & 3) + (x & 1)
                p(f"v_fmamk_f32 v8, v6, {f32(sig)}, v7"); p("v_cos_f32 v9, v8"); p("v_sin_f32 v8, v8")
                if x == 0: p("v_cmp_eq_u32 vcc, 0, v14"); p("v_cndmask_b32 v8, v8, v12, vcc")
                p(f"v_mul_f32 v9, v9, v{10+(x & 1)}"); p(f"v_mul_f32 v8, v8, v{10+(x & 1)}")
                p("v_cvt_pk_bf16_f32 v8, v9, -v8"); p(f"v_accvgpr_write_b32 a{MI+16*nu+x}, v8")
        CA, CD, AA, AB = 32, 96, 128, 192
        PR = 14
        p("v_bfe_u32 v5, v0, 2, 1"); p("v_bfe_u32 v6, v0, 3, 2"); p("v_and_b32 v7, 3, v0"); p("v_lshl_add_u32 v7, v6, 2, v7"); p("v_lshl_add_u32 v7, v5, 4, v7")
        p(f"s_lshl_b32 s52, {sWAVE}, 5"); p("v_add_u32 v7, s52, v7")
        p("v_cmp_eq_u32 s[48:49], 0, v7")
        p(f"s_lshl_b32 s52, {sP}, 1"); p("s_and_b32 s53, s52, 15"); p("s_sub_u32 s54, 0, s52"); p("s_and_b32 s54, s54, 15"); p("s_add_u32 s54, s54, 512")
        p("v_lshlrev_b32 v5, 11, v1"); p("v_lshl_add_u32 v6, v7, 1, v5")
        p("v_add_u32 v8, s53, v6"); p("v_add_u32 v9, s54, v6")
        p("v_mov_b32 v6, 448"); p("v_cndmask_b32 v6, 0, v6, s[48:49]"); p("v_add_u32 v10, v8, v6"); p("v_add_u32 v11, v9, v6")
        p(f"s_mov_b32 s52, {f32(2/2048/448)}"); p(f"s_cmp_eq_u32 {sP}, 0"); p(f"s_cselect_b32 s52, {f32(4/2048/448)}, s52")
        p("v_mov_b32 v12, s52"); p("v_mul_f32 v13, 0.5, v12"); p("v_cndmask_b32 v13, v12, v13, s[48:49]")
        p("v_cndmask_b32 v26, v13, 0, s[48:49]")
        p(f"v_or_b32 v6, {sP}, v1"); p("v_cmp_eq_u32 s[50:51], 0, v6")
        p(f"s_lshl_b32 s52, {sWAVE}, 14"); p("s_add_u32 s52, s52, 65536"); p(f"v_add_u32 v28, s52, {vL16}")
        for r in range(AA, AA + 12): p(f"v_mov_b32 v{r}, 0")
        p("s_waitcnt vmcnt(0)"); p("s_barrier")
        def coef(x, job):
            sig = 16 * (x >> 3) + 4 * ((x >> 1) & 3) + (x & 1); off = sig * 1024 + (256 if job else 0)
            a, b, c, d = AA, AA + 1, AA + 2, AA + 3
            dst = CA + 4 * x if job == 0 else AA + 16
            sa, sb = ("v13", "v26") if job == 0 else ("v12", "v12")
            p(f"ds_read_u16_d16_hi v{a}, v8 offset:{off}"); p(f"ds_read_u16_d16_hi v{b}, v8 offset:{off+32768}")
            p(f"ds_read_u16_d16_hi v{c}, v9 offset:{off}"); p(f"ds_read_u16_d16_hi v{d}, v9 offset:{off+32768}")
            if job == 0:
                p(f"ds_read_u16_d16_hi v{a+4}, v10 offset:{off}"); p(f"ds_read_u16_d16_hi v{b+4}, v10 offset:{off+32768}")
                p(f"ds_read_u16_d16_hi v{c+4}, v11 offset:{off}"); p(f"ds_read_u16_d16_hi v{d+4}, v11 offset:{off+32768}")
            p(f"v_add_f32 v{dst}, v{a}, v{c}"); p(f"v_sub_f32 v{dst+1}, v{b}, v{d}"); p(f"v_add_f32 v{dst+2}, v{b}, v{d}"); p(f"v_sub_f32 v{dst+3}, v{c}, v{a}")
            if job == 0:
                p(f"v_add_f32 v{CD+2*x}, v{a+4}, v{c+4}"); p(f"v_sub_f32 v{CD+2*x+1}, v{b+4}, v{d+4}")
            if x == 0:
                pr = PR + (6 if job else 0)
                p(f"v_cndmask_b32 v{pr}, v{dst}, v{a}, s[50:51]"); p(f"v_cndmask_b32 v{pr+1}, v{dst}, v{c}, s[50:51]")
                p(f"v_cndmask_b32 v{pr+2}, v{dst+2}, v{b}, s[50:51]"); p(f"v_cndmask_b32 v{pr+3}, v{dst+2}, v{d}, s[50:51]")
                p(f"v_cndmask_b32 v{dst+1}, v{dst+1}, 0, s[50:51]"); p(f"v_cndmask_b32 v{dst+3}, v{dst+3}, 0, s[50:51]")
                p(f"v_mul_f32 v{pr}, v{pr}, {sa}"); p(f"v_mul_f32 v{pr+1}, v{pr+1}, {sa}"); p(f"v_mul_f32 v{pr+2}, v{pr+2}, {sb}"); p(f"v_mul_f32 v{pr+3}, v{pr+3}, {sb}")
                if job == 0:
                    p(f"v_cndmask_b32 v{pr+4}, v{CD}, v{a+4}, s[50:51]"); p(f"v_cndmask_b32 v{pr+5}, v{CD}, v{c+4}, s[50:51]")
                    p(f"v_cndmask_b32 v{CD+1}, v{CD+1}, 0, s[50:51]")
                    p(f"v_mul_f32 v{pr+4}, v{pr+4}, {sa}"); p(f"v_mul_f32 v{pr+5}, v{pr+5}, {sa}")
            p(f"v_mul_f32 v{dst}, v{dst}, {sa}"); p(f"v_mul_f32 v{dst+1}, v{dst+1}, {sa}"); p(f"v_mul_f32 v{dst+2}, v{dst+2}, {sb}"); p(f"v_mul_f32 v{dst+3}, v{dst+3}, {sb}")
            if job == 0:
                p(f"v_mul_f32 v{CD+2*x}, v{CD+2*x}, {sa}"); p(f"v_mul_f32 v{CD+2*x+1}, v{CD+2*x+1}, {sa}")
            else:
                p(f"ds_write_b128 v28, v[{dst}:{dst+3}] offset:{x*1024}")
        for x in range(16): coef(x, 0)
        for x in range(16): coef(x, 1)
        p("v_lshlrev_b32 v8, 9, v1"); p("v_lshl_add_u32 v8, v2, 2, v8")
        p("v_lshlrev_b32 v9, 2, v0")
        p(f"s_mul_i32 s52, {sP}, 57344"); p(f"s_lshl_b32 s53, {sWAVE}, 13"); p("s_add_u32 s52, s52, s53"); p(f"s_add_u32 s52, s52, {WS_Q}")
        p("s_add_u32 s53, s52, 32768"); p(f"s_cmp_eq_u32 {sWAVE}, 3"); p(f"s_cselect_b32 s53, {OOB}, s53"); p("s_cselect_b64 s[48:49], 0, -1")
        p(f"s_lshr_b32 s56, {sP}, 4"); p(f"s_lshl_b32 s54, {sWAVE}, 1"); p("s_add_u32 s54, s54, s56"); p("s_lshl_b32 s54, s54, 8"); p(f"s_add_u32 s54, s54, {WS_QF}")
        p("s_add_u32 s55, s54, 2048")
        p("s_mul_i32 s56, s56, 28672"); p(f"s_and_b32 s57, {sP}, 15"); p("s_lshl_b32 s57, s57, 7"); p("s_add_u32 s56, s56, s57")
        p(f"s_lshl_b32 s57, {sWAVE}, 11"); p("s_add_u32 s56, s56, s57"); p(f"s_add_u32 s56, s56, {WS_Z}")
        p("s_add_u32 s57, s56, 8192"); p(f"s_cmp_eq_u32 {sWAVE}, 3"); p(f"s_cselect_b32 s57, {OOB}, s57")
        p("v_lshrrev_b32 v5, 3, v0"); p("v_and_b32 v6, 7, v0"); p("v_mul_u32_u24 v10, 57344, v5"); p("v_lshl_add_u32 v10, v6, 4, v10")
        p(f"s_lshl_b32 s58, {sWAVE}, 13"); p("s_add_u32 s58, s58, 131072")
        p("v_and_b32 v7, 3, v5"); p("v_lshlrev_b32 v7, 1, v7"); p("v_xor_b32 v7, v7, v6"); p("v_lshlrev_b32 v7, 4, v7"); p("v_lshl_add_u32 v7, v5, 7, v7"); p("v_add_u32 v13, s58, v7")
        p(f"s_bfe_u32 s59, {sP}, {1 | (2 << 16)}")
        p("v_lshlrev_b32 v5, 1, v1"); p("v_xor_b32 v5, s59, v5"); p("v_and_b32 v6, 3, v4"); p("v_xor_b32 v5, v5, v6"); p("v_lshl_add_u32 v5, v5, 1, v3")
        p("v_lshlrev_b32 v5, 4, v5"); p("v_lshl_add_u32 v5, v4, 7, v5"); p("v_add_u32 v11, s58, v5"); p("v_xor_b32 v12, 32, v11")
        p(f"s_lshl_b32 s59, {sP}, 2"); p(f"s_add_u32 s59, s59, {sWAVE}"); p("s_lshl_b32 s59, s59, 2"); p(f"s_add_u32 s59, s59, {WS_ZF}")
        p(f"s_mov_b64 {sMASK}, -1")
        self.stamp("setup")
        def qloads(job):
            for part in range(2):
                p(f"s_add_u32 {sSO}, s{52+job}, {part*4096}")
                for kap in range(4):
                    for i in range(4):
                        p(f"buffer_load_dword a{IN+32*job+16*part+4*kap+i}, v8, {sW}, {sSO} offen offset:{(8*kap+i)*128} sc1")
        for job in range(2):
            ld = f"buffer_load_dword v{5+job}, v9, {sW}, s{54+job} offen sc1"
            p(ld); p.extend(self.poll_check(f"v{5+job}", ld, sMASK if job == 0 else "s[48:49]"))
            if job == 0: self.stamp("qflag")
            qloads(job)
        S = Sched(p, o["cap"])
        def fwd(job):
            A = AA if job == 0 else AB
            for part in range(2):
                for mu in range(2):
                    a = A + 32 * part + 16 * mu
                    for kap in range(4):
                        b = IN + 32 * job + 16 * part + 4 * kap
                        S.mfma(f"v_mfma_f32_32x32x16_bf16 v[{a}:{a+15}], a[{MF+16*mu+4*kap}:{MF+16*mu+4*kap+3}], a[{b}:{b+3}], {'0' if kap == 0 else f'v[{a}:{a+15}]'}")
        def mul(job):
            A = AA if job == 0 else AB; L = []
            for x in range(16):
                fr, fi = f"v[{A+2*x}:{A+2*x+1}]", f"v[{A+32+2*x}:{A+32+2*x+1}]"
                al, be = f"v[{CA+4*x}:{CA+4*x+1}]", f"v[{CA+4*x+2}:{CA+4*x+3}]"
                de = f"v[{CD+2*x}:{CD+2*x+1}]" if job == 0 else al
                g0, g1 = ("v[2:3]", "v[4:5]") if x % 2 == 0 else ("v[6:7]", "v[30:31]")
                if x == 0:
                    pr = PR + (6 if job else 0)
                    ar, br = f"v[{pr}:{pr+1}]", f"v[{pr+2}:{pr+3}]"; dr = f"v[{pr+4}:{pr+5}]" if job == 0 else ar
                    m2, m3 = "", ""
                else:
                    ar, br, dr = al, be, de; m2, m3 = " op_sel_hi:[1,0]", " op_sel_hi:[1,0,1]"
                rot = " op_sel:[1,1,0] op_sel_hi:[0,1,1]"
                L += [f"v_pk_mul_f32 {g0}, {fr}, {ar}{m2}", f"v_pk_mul_f32 {g1}, {fr}, {br}{m2}",
                      f"v_pk_fma_f32 {g0}, {fr}, {al}, {g0}{rot} neg_lo:[1,0,0]", f"v_pk_fma_f32 {g1}, {fr}, {be}, {g1}{rot} neg_lo:[1,0,0]",
                      f"v_pk_fma_f32 {g0}, {fi}, {br}, {g0}{m3} neg_lo:[1,0,0] neg_hi:[1,0,0]", f"v_pk_fma_f32 {g1}, {fi}, {dr}, {g1}{m3}",
                      f"v_pk_fma_f32 {g0}, {fi}, {be}, {g0}{rot} neg_hi:[1,0,0]", f"v_pk_fma_f32 {g1}, {fi}, {de}, {g1}{rot} neg_lo:[1,0,0]"]
                a0 = int(g0[2:g0.index(":")]); a1 = int(g1[2:g1.index(":")])
                L += [f"v_cvt_pk_bf16_f32 v{A+x}, v{a0}, v{a0+1}", f"v_cvt_pk_bf16_f32 v{A+32+x}, v{a1}, v{a1+1}"]
                if job == 0: L.append(f"ds_read_b128 v[{CA+4*x}:{CA+4*x+3}], v28 offset:{x*1024}")
            return L
        OB = CD
        def outp(job, ti):
            A = AA if job == 0 else AB; part, nu = ti >> 1, ti & 1
            c = A + 16 + 32 * (ti & 1); ob = OB + 16 * (ti & 1); L = []
            for par in range(2):
                L += [f"v_cvt_pk_bf16_f32 v{ob+4*par+e}, v{c+4*e+par}, v{c+4*e+2+par}" for e in range(4)]
                L.append(mk(f"ds_write_b128 v{11+par}, v[{ob+4*par}:{ob+4*par+3}] offset:{ti*2048}"))
            for h in range(2): L.append(f"ds_read_b128 v[{ob+8+4*h}:{ob+8+4*h+3}], v13 offset:{ti*2048+h*1024}")
            for h in range(2):
                L.append(f"s_add_u32 {sSO}, s{56+job}, {(16*nu+8*h)*57344 + part*14336}")
                L.append(mk(f"buffer_store_dwordx4 v[{ob+8+4*h}:{ob+8+4*h+3}], v10, {sW}, {sSO} offen sc1"))
            return L
        def inv(job):
            A = AA if job == 0 else AB
            for ti in range(4):
                part, nu = ti >> 1, ti & 1; c = A + 16 + 32 * (ti & 1)
                if ti >= 2: p.extend(outp(job, ti - 2))
                for kap in range(4):
                    g = A + 32 * part + 4 * kap
                    S.mfma(f"v_mfma_f32_32x32x16_bf16 v[{c}:{c+15}], v[{g}:{g+3}], a[{MI+16*nu+4*kap}:{MI+16*nu+4*kap+3}], {'0' if kap == 0 else f'v[{c}:{c+15}]'}")
            for ti in (2, 3): p.extend(outp(job, ti))
        fwd(0); self.stamp("fwdA")
        S.add(mul(0), delay=2); fwd(1); S.drain(); self.stamp("mulA")
        S.add(mul(1)); inv(0); S.drain(); self.stamp("mulB")
        inv(1); self.stamp("invB")
        p("s_waitcnt vmcnt(0)")
        p(f"buffer_store_dword {vTAG}, {vL0}, {sW}, s59 offen sc1")
        self.stamp("end"); self.stamp("end_real", real=True)
        self.dump_stamps()
        p("s_endpgm")

    def build(self):
        self.entry(); self.glu(); self.f2()
        p = self.p
        p.ins += self.tailcode.ins
        p.reset(); p("L_done:"); p("s_endpgm")
        ins, st = finalize(p, self.o.get("verbose", False))
        al = align32(ins)
        hdr = open("recurrent_scan__spectral_gfnet__glu_gated_glu__prompt.s.ref").read().split("; Override")[0]
        head = hdr + "; @launch grid=(256,1,1) block=(256,1,1) lds=163840\n" + "\n".join(
            ['.amdgcn_target "amdgcn-amd-amdhsa--gfx950"', ".text", f".globl {KN}", ".p2align 8", f".type {KN},@function", f"{KN}:"])
        tail = [".fill 64, 4, 0xbf800000", '.section .rodata,"a"', ".p2align 6", f".amdhsa_kernel {KN}",
                "  .amdhsa_next_free_vgpr 512", "  .amdhsa_next_free_sgpr 102", "  .amdhsa_accum_offset 256",
                "  .amdhsa_group_segment_fixed_size 0", "  .amdhsa_kernarg_size 80", "  .amdhsa_user_sgpr_count 2",
                "  .amdhsa_user_sgpr_kernarg_segment_ptr 1", "  .amdhsa_system_sgpr_workgroup_id_x 1",
                "  .amdhsa_float_denorm_mode_32 3", ".end_amdhsa_kernel"]
        body = [("" if i.kind == "meta" else "    ") + i.text for i in ins]
        off = 0; f2off = None
        for i in ins:
            if i.kind == "meta":
                if i.op == "L_f2:": f2off = off
                m = re.match(r'\.p2alignl? (\d+)', i.op)
                if m: a = 1 << int(m.group(1)); off = (off + a - 1) // a * a
            else: off += i.size
        self.info = dict(stats=st, align=al, f2off=f2off, total=off)
        return head + "\n" + "\n".join(body + tail) + "\n"

def generate(**o):
    g = Gen(**o); g.build()
    o2 = dict(o); o2["glu_bytes"] = (g.info["f2off"] - 256) & ~3; o2["f2_bytes"] = (g.info["total"] - g.info["f2off"] - 64) & ~3
    g = Gen(**o2); s = g.build()
    return s, g

if __name__ == "__main__":
    o = {}
    out = sys.argv[1] if len(sys.argv) > 1 else "k.s"
    for a in sys.argv[2:]:
        k, v = a.split("="); o[k] = eval(v)
    s, g = generate(**o)
    open(out, "w").write(s)
    print(g.info, g.stamp_names)
```
